```python
import torch

def _softmax(x, axis=-1):
    return torch.softmax(x, dim=axis)
def _gelu(x):
    return torch.nn.functional.gelu(x, approximate="tanh")
def _silu(x):
    return torch.nn.functional.silu(x)
def _sigmoid(x):
    return torch.sigmoid(x)
def _layernorm(x, axis=-1, eps=1e-5):
    m = x.mean(dim=axis, keepdim=True)
    v = x.var(dim=axis, keepdim=True, unbiased=False)
    return (x - m) / torch.sqrt(v + eps)
def _scatter_add(tgt, idx, src, axis=0):
    return tgt.clone().index_add_(axis, idx, src)
def _segment_sum(src, seg, n):
    out = torch.zeros((n,) + src.shape[1:], dtype=src.dtype)
    return out.index_add_(0, seg, src)
def _pad(x, pw):
    flat = tuple(v for pair in reversed(pw) for v in pair)
    return torch.nn.functional.pad(x, flat)

kernel_name = 'sequential_preLN__ssm_conv_s4d__mixer_channel_mlp__prompt'

def setup_inputs():

    _w = (lambda a: (lambda t: t.to(torch.bfloat16) if t.is_floating_point() else t)(torch.as_tensor(a)))
    def _A_setup():
        Bsz, L, D, N = 1, 2048, 448, 256
        return {
            "u": _w((lambda *s: torch.randn(*s, dtype=torch.bfloat16) * 0.05)(Bsz, L, D)),
            "log_A_real": _w((lambda *s: torch.randn(*s, dtype=torch.bfloat16) * 3.2)(D, N) * 0.5),
            "A_imag": _w((lambda *s: torch.randn(*s, dtype=torch.bfloat16) * 0.05)(D, N) * 3.14),
            "C_real": _w((lambda *s: torch.randn(*s, dtype=torch.bfloat16) * 0.1)(D, N) / N ** 0.5),
            "C_imag": _w((lambda *s: torch.randn(*s, dtype=torch.bfloat16) * 0.1)(D, N) / N ** 0.5),
            "log_dt": _w((lambda *s: torch.randn(*s, dtype=torch.bfloat16) * 0.05)(D) * 0.5 - 4.0),
            "D_skip": _w((lambda *s: torch.randn(*s, dtype=torch.bfloat16) * 0.05)(D)),
        }
    _A_in = _A_setup()

    def _B_setup():
        B, S, D, F = 1, 2048, 448, 1792
        return {
            "x": _w((lambda *s: torch.randn(*s, dtype=torch.bfloat16) * 0.05)(B, S, D)),
            "w1": _w((lambda *s: torch.randn(*s, dtype=torch.bfloat16) * 1.6)(D, F) * (D ** -0.5)),
            "b1": _w((lambda *s: torch.randn(*s, dtype=torch.bfloat16) * 0.8)(F)),
            "w2": _w((lambda *s: torch.randn(*s, dtype=torch.bfloat16) * 0.05)(F, D) * (F ** -0.5)),
            "b2": _w((lambda *s: torch.randn(*s, dtype=torch.bfloat16) * 0.05)(D)),
        }
    _B_in = _B_setup()

    return {
        "A_u": _A_in["u"],
        "A_log_A_real": _A_in["log_A_real"],
        "A_A_imag": _A_in["A_imag"],
        "A_C_real": _A_in["C_real"],
        "A_C_imag": _A_in["C_imag"],
        "A_log_dt": _A_in["log_dt"],
        "A_D_skip": _A_in["D_skip"],
        "B_x": _B_in["x"],
        "B_w1": _B_in["w1"],
        "B_b1": _B_in["b1"],
        "B_w2": _B_in["w2"],
        "B_b2": _B_in["b2"],
    }

def reference(A_u, A_log_A_real, A_A_imag, A_C_real, A_C_imag, A_log_dt, A_D_skip, B_x, B_w1, B_b1, B_w2, B_b2):
    def _A_ref(u, log_A_real, A_imag, C_real, C_imag, log_dt, D_skip):
        L = u.shape[1]
        dt = torch.exp(log_dt)
        A = -torch.exp(log_A_real) + 1j * A_imag
        C = (C_real + 1j * C_imag) * dt[:, None]
        pos = (lambda x, dt: x.to(dt))(torch.arange(L), log_dt.dtype)
        P = torch.exp((A * dt[:, None])[:, :, None] * pos[None, None, :])
        K = 2.0 * torch.einsum("dn,dnl->dl", C, P).real
        L2 = 2 * L
        u_t = (lambda x, *d: x.permute(*d))(u, 0, 2, 1)
        Kf = (lambda x, *a, **k: torch.fft.rfft(x.float(), *a, **k))(K, L2)
        Uf = (lambda x, *a, **k: torch.fft.rfft(x.float(), *a, **k))(u_t, L2)
        y = (lambda x, *a, **k: torch.fft.irfft(x, *a, **k).to(torch.bfloat16))(Uf * Kf[None, :, :], L2)[:, :, :L]
        y = (lambda x, *d: x.permute(*d))(y, 0, 2, 1)
        return y + u * D_skip[None, None, :]

    def _B_ref(x, w1, b1, w2, b2):
        y = _layernorm(x, axis=-1)
        h = _gelu(torch.einsum("bsd,df->bsf", y, w1) + b1)
        return torch.einsum("bsf,fd->bsd", h, w2) + b2

    x = A_u
    h = x + _A_ref(_layernorm(x, axis=-1), A_log_A_real, A_A_imag, A_C_real, A_C_imag, A_log_dt, A_D_skip)
    h2 = h + _B_ref(_layernorm(h, axis=-1), B_w1, B_b1, B_w2, B_b2)
    return h2
```

```python
import re, copy
RX = re.compile(r'\b([vs])(\d+)\b|\b([vs])\[(\d+):(\d+)\]|\b(vcc|exec|m0)\b')
def regs(op):
    out = []
    for m in RX.finditer(op):
        if m.group(1): out.append(m.group(1) + m.group(2))
        elif m.group(3): out += [m.group(3) + str(i) for i in range(int(m.group(4)), int(m.group(5)) + 1)]
        else: out.append(m.group(6))
    return out
TRANS = ('v_exp_', 'v_log_', 'v_rcp_', 'v_rsq_', 'v_sqrt_', 'v_sin_', 'v_cos_')
class Ins:
    def __init__(s, t):
        s.t = t; p = t.split(None, 1); s.m = m = p[0]
        ops = [o.strip() for o in p[1].split(',')] if len(p) > 1 else []
        j = [];
        for o in ops:
            if j and j[-1].count('[') > j[-1].count(']'): j[-1] += ',' + o
            else: j.append(o)
        ops = j
        s.k = 'o'; s.w = []; s.r = []; s.c = []; s.ab = []; s.data = []; s.passes = 0
        R = lambda l: [x for o in l for x in regs(o)]
        if m.startswith('v_mfma'):
            s.k = 'mfma'; s.w = regs(ops[0]); s.ab = R(ops[1:3]); s.c = regs(ops[3]); s.r = s.ab + s.c
            s.passes = 8 if '32x32' in m else 4
        elif m.startswith('v_'):
            s.k = 'valu'; s.w = regs(ops[0]); s.r = R(ops[1:])
            if 'swap' in m: s.w = R(ops[:2]); s.r = list(s.w)
            if m.startswith(('v_dot2c', 'v_fmac', 'v_pk_fmac')): s.c = list(s.w); s.r += s.w
            if m.startswith('v_dot2_'): s.c = regs(ops[3])
            if 'dpp' in m: s.r += s.w
            if m.startswith('v_cndmask') and len(ops) < 4: s.r.append('vcc')
        elif m.startswith('ds_read'):
            s.k = 'dsr'; s.w = regs(ops[0]); s.r = R(ops[1:])
        elif m.startswith('ds_'):
            s.k = 'dsw'; s.r = R(ops)
        elif m.startswith('global_load'):
            s.k = 'vml'; s.w = regs(ops[0]); s.r = R(ops[1:])
        elif m.startswith('global_store'):
            s.k = 'vms'; s.r = R(ops); s.data = regs(ops[1]) if ('x4' in m or 'x3' in m) else []
        elif m.startswith('s_load') or m.startswith('s_memtime') or m.startswith('s_memrealtime'):
            s.k = 'smem'; s.w = regs(ops[0]); s.r = R(ops[1:])
        elif m.startswith(('s_cmp', 's_bitcmp')):
            s.k = 'salu'; s.r = R(ops)
        elif m.startswith('s_cbranch_vcc'):
            s.k = 'br'; s.r = ['vcc']
        elif m.startswith(('s_cbranch', 's_branch', 's_endpgm')): s.k = 'br'
        elif m in ('s_waitcnt', 's_barrier', 's_nop', 's_setprio', 's_sleep'): s.k = 'o'
        elif m.startswith('s_'):
            s.k = 'salu'; s.w = regs(ops[0]); s.r = R(ops[1:])
            if 'saveexec' in m: s.w.append('exec')
        else: raise Exception('unknown ' + t)
        s.trans = m.startswith(TRANS); s.dot = m.startswith('v_dot')
        s.dpp = 'dpp' in m; s.perm = 'permlane' in m; s.rl = m.startswith(('v_readlane', 'v_readfirstlane'))
def need(p, c):
    n = 0; pw = set(p.w); cr = set(c.r); cw = set(c.w)
    mem = c.k in ('dsr', 'dsw', 'vml', 'vms')
    if p.k == 'mfma':
        if c.k == 'mfma':
            if pw & set(c.ab): n = p.passes + 4
            elif pw & set(c.c) and not (p.w == c.c and p.passes == c.passes): n = p.passes + 2
            elif pw & cw and not pw & set(c.c): n = p.passes + 2
        elif (c.k == 'valu' or mem) and pw & (cr | cw): n = p.passes + 4
        if c.k == 'valu' and set(p.c) & cw: n = max(n, p.passes - 1)
    elif p.k == 'valu':
        v = {x for x in pw if x[0] == 'v' and x != 'vcc'}; sg = pw - v
        if c.k == 'mfma' and v & cr: n = 2
        if c.k == 'valu':
            if v & cr:
                if p.trans: n = max(n, 1)
                if c.dpp or c.perm: n = max(n, 2)
                if c.rl: n = max(n, 1)
            if sg & cr: n = max(n, 2)
        if mem and sg & cr: n = max(n, 5)
        if mem and p.trans and v & cr: n = max(n, 1)
        if p.dot and v & (cr | cw):
            if not (c.m == p.m and set(c.c) == v and sum(x in v for x in c.r) == len(v)): n = max(n, 3)
    elif p.k == 'vms' and p.data and set(p.data) & cw: n = 2
    elif p.k == 'dsw' and ('b128' in p.m) and c.k == 'valu' and set(p.r) & cw: n = 1
    return n
NL = 0
class S:
    def __init__(s):
        s.out = []; s.hist = []; s.vm = []; s.lg = []; s.nn = 0; s.opt = set(); s.keep = []
    def fork(s):
        n = S(); n.hist = list(s.hist); n.vm = list(s.vm); n.lg = list(s.lg); n.opt = set(s.opt); n.keep = list(s.keep); return n
    def raw(s, t): s.out.append(t)
    def label(s, l): s.out.append(l + ':')
    def _emit(s, t, i, w=1):
        s.out.append('  ' + t); s.hist.append((i, w)); s.hist = s.hist[-48:]
    def wait(s, vm=None, lg=None):
        p = []
        if vm is not None and len(s.vm) > vm:
            s.vm = s.vm[len(s.vm) - vm:] if vm else []
            p.append(f'vmcnt({min(63, sum(id(x) not in s.opt for x in s.vm))})')
        if lg is not None and len(s.lg) > lg:
            if any(x.k == 'smem' for x in s.lg): lg = 0
            s.lg = s.lg[len(s.lg) - lg:] if lg else []
            p.append(f'lgkmcnt({min(15, sum(id(x) not in s.opt for x in s.lg))})')
        if p: s._emit('s_waitcnt ' + ' '.join(p), Ins('s_waitcnt 0'))
    def cond(s, br, body):
        global NL; NL += 1; l = f'Lc{NL}'
        s(f'{br} {l}'); vm0, lg0, h0 = list(s.vm), list(s.lg), list(s.hist)
        body(s); s.label(l)
        nv = [x for x in s.vm if x not in vm0]; nl = [x for x in s.lg if x not in lg0]
        for x in nv + nl: s.opt.add(id(x)); s.keep.append(x)
        s.vm = vm0 + nv; s.lg = lg0 + nl
        s.hist = h0 + [(p, 0) for p, w in s.hist if all(p is not q for q, _ in h0)]
    def __call__(s, t):
        if isinstance(t, (list, tuple)):
            for x in t: s(x)
            return
        if callable(t): return t(s)
        if '\n' in t:
            for x in t.split('\n'):
                x = x.split(';')[0].strip()
                if x: s(x)
            return
        i = Ins(t); use = set(i.r) | set(i.w); vm = lg = None
        for q, k in ((s.vm, 'vm'), (s.lg, 'lg')):
            for n, p in enumerate(q):
                if set(p.w) & use:
                    if k == 'vm': vm = len(q) - n - 1
                    else: lg = len(q) - n - 1
        s.wait(vm, lg)
        d = 0; n = 0
        for p, w in reversed(s.hist):
            n = max(n, need(p, i) - d); d += w
        if n > 0:
            s.nn += n
            while n > 0:
                k = min(n, 16); s._emit(f's_nop {k-1}', Ins('s_nop 0'), k); n -= k
        w = 1
        if i.m == 's_nop': w = int(t.split()[1]) + 1
        s._emit(t, i, w)
        if i.k in ('vml', 'vms'): s.vm.append(i)
        if i.k in ('dsr', 'dsw', 'smem'): s.lg.append(i)
    def barrier(s, keep=False):
        n = len(s.lg)
        if keep:
            n = 0
            for k, p in enumerate(s.lg):
                if p.k == 'dsw': n = k + 1
        if n: s.wait(lg=len(s.lg) - n)
        s('s_barrier')
def weave(main, fill, start=0, end=None):
    end = len(main) if end is None else end
    out = []; n = end - start; k = 0
    for i, m in enumerate(main):
        out.append(m)
        if start <= i < end:
            t = (len(fill) * (i - start + 1) + n - 1) // n
            out += fill[k:t]; k = t
    return out + fill[k:]
def L(t): return [x.split(';')[0].strip() for x in t.split('\n') if x.split(';')[0].strip()]
```

```python
from dsl import *
import struct, math
def fb(x): return hex(struct.unpack('<I', struct.pack('<f', x))[0])
def V(a, n): return f'v[{a}:{a+n-1}]'
W1F, W2F, STATS, XT, W1S, W2S, HT, PART, DBG = 4096, 32768, 65536, 131072, 0x400000, 0x600000, 0x800000, 0xA00000, 0x2000000
GS, ROW, HI = 30208, 528, 16896
RB, RCH, RCP = 120832, 8320, 4160
UB, UCH = 137472, 4576
YB, VB = 0, 40960
HB, HH = 61440, 28736
GB, OB, SB = 0, 32768, 50176
LDS = 146688
SPIN = 20000
LOG2E = 1.4426950408889634
TAG = 's34'; W = 's35'; C = 's37'; TILE = 's38'; J = 's39'
def base(s, d, src, off):
    s(f's_add_u32 s{d}, s{src}, {off}'); s(f's_addc_u32 s{d+1}, s{src+1}, 0')
STAMP = False
def stamp(s, n):
    if STAMP: s(f's_memrealtime s[{70+2*n}:{71+2*n}]')
def prologue(s):
    s('''s_cmp_ge_u32 s2, 256
    s_cbranch_scc1 Lend''')
    stamp(s, 0)
    s('''s_load_dwordx16 s[4:19], s[0:1], 0
    s_load_dwordx2 s[32:33], s[0:1], 112
    s_load_dwordx8 s[20:27], s[0:1], 64
    s_load_dwordx4 s[28:31], s[0:1], 96
    v_lshrrev_b32 v11, 6, v0
    v_and_b32 v1, 63, v0
    v_readfirstlane_b32 s35, v11
    s_sub_u32 s36, s2, 32
    s_and_b32 s42, s36, 7
    s_lshr_b32 s43, s36, 3
    s_mul_i32 s37, s42, 28
    s_add_u32 s37, s37, s43
    s_lshl_b32 s38, s42, 2
    s_and_b32 s42, s43, 3
    s_add_u32 s38, s38, s42
    s_lshr_b32 s39, s43, 2
    s_mul_i32 s3, s2, 7168
    v_and_b32 v11, 3, v0
    v_lshrrev_b32 v12, 2, v0
    v_mul_u32_u24 v11, 1792, v11
    v_lshl_add_u32 v12, v12, 3, v11
    v_lshlrev_b32 v13, 4, v0''')
    s('s_load_dword s34, s[32:33], 0')
    base(s, 44, 4, 's3')
def xt_issue(s):
    s('''global_load_dwordx2 v[14:15], v12, s[44:45]
    global_load_dwordx2 v[16:17], v12, s[44:45] offset:896''')
def mktag(s): s('s_xor_b32 s34, s34, 0x5bd1e995')
def xt_finish(s):
    s('s_lshl_b32 s42, s3, 1'); s(f's_add_u32 s42, s42, {XT+3584}'); base(s, 46, 32, 's42')
    s('''v_mov_b32 v21, s34
    v_mov_b32 v23, s34
    v_mov_b32 v25, s34
    v_mov_b32 v27, s34
    v_mov_b32 v20, v14
    v_mov_b32 v24, v15
    v_mov_b32 v22, v16
    v_mov_b32 v26, v17
    global_store_dwordx4 v13, v[20:23], s[46:47] offset:-3584 sc1
    global_store_dwordx4 v13, v[24:27], s[46:47] offset:3584 sc1''')
def st_issue(s):
    s('''v_lshrrev_b32 v11, 3, v1
    v_and_b32 v12, 7, v1
    v_mul_u32_u24 v11, 896, v11
    v_lshl_add_u32 v12, v12, 4, v11''')
    for i in range(7): s(f'global_load_dwordx4 {V(64+4*i,4)}, v12, s[44:45] offset:{128*i}')
def st_prefill(s):
    s(f's_add_u32 s42, s3, {HT+3072}'); base(s, 46, 32, 's42')
    s('''v_lshlrev_b32 v13, 4, v1
    v_mov_b32 v20, -1
    v_mov_b32 v21, -1
    v_mov_b32 v22, -1
    v_mov_b32 v23, -1''')
    for i in range(7): s(f'global_store_dwordx4 v13, v[20:23], s[46:47] offset:{1024*i-3072} sc1')
def bf16r(s, d, a):
    s(f'v_cvt_pk_bf16_f32 {d}, {a}, {a}'); s(f'v_and_b32 {d}, 0xffff0000, {d}')
def st_finish(s):
    s('''v_mov_b32 v14, 0x3f803f80
    v_mov_b32 v16, 0
    v_mov_b32 v17, 0
    v_mov_b32 v18, 0
    v_mov_b32 v19, 0''')
    for i in range(28):
        s(f'v_dot2c_f32_bf16 v{16+(i&1)}, v{64+i}, v14'); s(f'v_dot2c_f32_bf16 v{18+(i&1)}, v{64+i}, v{64+i}')
    s('''v_add_f32 v16, v16, v17
    v_add_f32 v18, v18, v19''')
    for d in ('quad_perm:[1,0,3,2]', 'quad_perm:[2,3,0,1]', 'row_half_mirror'):
        s(f'v_add_f32_dpp v16, v16, v16 {d} row_mask:0xf bank_mask:0xf')
        s(f'v_add_f32_dpp v18, v18, v18 {d} row_mask:0xf bank_mask:0xf')
    s(f'''v_mul_f32 v16, {fb(1/448)}, v16
    v_mul_f32 v18, {fb(1/448)}, v18
    v_fma_f32 v18, -v16, v16, v18
    v_max_f32 v18, 0, v18''')
    bf16r(s, 'v18', 'v18'); s(f'v_add_f32 v18, {fb(1e-5)}, v18'); bf16r(s, 'v18', 'v18')
    s('''v_sqrt_f32 v18, v18
    v_mov_b32 v15, s34
    v_cvt_pk_bf16_f32 v14, v16, v18
    v_and_b32 v11, 7, v1
    v_cmp_eq_u32 vcc, 0, v11
    s_lshl_b32 s42, s2, 6''')
    s(f's_add_u32 s42, s42, {STATS}'); base(s, 46, 32, 's42')
    s.wait(vm=0)
    s('''s_and_saveexec_b64 s[48:49], vcc
    global_store_dwordx2 v1, v[14:15], s[46:47] sc1
    s_mov_b64 exec, s[48:49]''')
def tr_addr(s, d, t):
    s(f'''v_lshrrev_b32 {d}, 5, v1
    v_bfe_u32 {t}, v1, 2, 2
    v_lshl_add_u32 {d}, {d}, 3, {t}
    v_bfe_u32 {t}, v1, 4, 1
    v_lshlrev_b32 {d}, 6, {d}
    v_lshl_add_u32 {d}, {t}, 5, {d}
    v_and_b32 {t}, 3, v1
    v_lshl_add_u32 {d}, {t}, 3, {d}''')
def w1_issue(s):
    s('''s_lshr_b32 s50, s37, 3
    s_lshl_b32 s50, s50, 1
    s_and_b32 s42, s37, 1
    s_add_u32 s50, s50, s42
    s_bfe_u32 s51, s37, 0x20001
    s_mul_i32 s42, s51, 401408
    s_lshl_b32 s43, s50, 6
    s_add_u32 s42, s42, s43''')
    base(s, 52, 20, 's42')
    s('''v_lshrrev_b32 v11, 2, v1
    v_and_b32 v18, 3, v1
    v_mul_u32_u24 v11, 3584, v11
    v_lshl_add_u32 v18, v18, 4, v11''')
    for i in range(7):
        s(f'global_load_dwordx4 {V(64+4*i,4)}, v18, s[52:53]')
        if i < 6: s('v_add_u32 v18, 57344, v18')
def w1_unit(s):
    s('v_lshlrev_b32 v18, 4, v1'); s(f'v_add_u32 v19, {RB}, v18')
    tr_addr(s, 'v33', 'v11'); s(f'v_add_u32 v33, {RB}, v33')
    s('''s_mul_i32 s42, s50, 28
    s_mul_i32 s43, s51, 7
    s_add_u32 s42, s42, s43
    s_lshl_b32 s42, s42, 10''')
    s(f's_add_u32 s42, s42, {W1S+3072}'); base(s, 52, 32, 's42')
    for i in range(7): s(f'ds_write_b128 v19, {V(64+4*i,4)} offset:{1024*i}')
    for i in range(7):
        s(f'ds_read_b64_tr_b16 {V(96+4*i,2)}, v33 offset:{1024*i}'); s(f'ds_read_b64_tr_b16 {V(98+4*i,2)}, v33 offset:{1024*i+256}')
    for i in range(7): s(f'global_store_dwordx4 v18, {V(96+4*i,4)}, s[52:53] offset:{1024*i-3072} sc1')
def w1_flag(s):
    s('''s_lshl_b32 s42, s50, 2
    s_add_u32 s42, s42, s51
    s_lshl_b32 s42, s42, 7''')
    s(f's_add_u32 s42, s42, {W1F}'); base(s, 52, 32, 's42')
    s('''v_mov_b32 v18, 0
    v_mov_b32 v19, s34''')
    s.wait(vm=0)
    s('''s_mov_b64 exec, 1
    global_store_dword v18, v19, s[52:53] sc1
    s_mov_b64 exec, -1''')
def par_issue(s, isB):
    s('''s_lshl_b32 s42, s37, 2
    s_load_dword s40, s[14:15], s42
    s_load_dword s41, s[16:17], s42
    s_lshl_b32 s42, s37, 10
    v_and_b32 v28, 255, v0
    v_lshl_add_u32 v28, v28, 2, s42
    global_load_dword v29, v28, s[6:7]
    global_load_dword v30, v28, s[8:9]''')
    if isB: s('''global_load_dword v31, v28, s[10:11]
    global_load_dword v32, v28, s[12:13]''')
def exp_addr(s):
    s(f'''v_and_b32 v11, 255, v0
    v_lshlrev_b32 v11, 3, v11
    v_sub_u32 v11, 2047, v11
    v_cvt_f32_u32 v11, v11
    s_lshr_b32 s42, s35, 2
    s_mul_i32 s42, s42, {2*GS}''')
    for e in range(9): s(f'v_add_f32 v{34+e}, {fb(-e)}, v11')
    s('v_max_f32 v42, 0, v42')
    for e in range(0, 9, 2): s(f'v_cvt_pk_bf16_f32 v{34+e}, v{34+e}, v{34+min(e+1,8)}')
    for e in range(0, 9, 2):
        if e < 8: s(f'v_and_b32 v{35+e}, 0xffff0000, v{34+e}')
        s(f'v_lshlrev_b32 v{34+e}, 16, v{34+e}')
    for e in range(9): s(f'v_cvt_u32_f32 v{34+e}, v{34+e}')
    for e in range(9):
        p = f'v{34+e}'; d = f'v{2+e}'
        s(f'''v_lshrrev_b32 {d}, 8, {p}
        v_and_b32 v11, 7, {p}
        v_lshl_add_u32 {d}, {d}, 3, v11
        v_bfe_u32 v11, {p}, 3, 5
        v_lshl_add_u32 {d}, {d}, 5, v11
        v_lshl_add_u32 {d}, {d}, 2, s42''')
def kg_setup(s, isB):
    lo = LOG2E - struct.unpack('<f', struct.pack('<f', LOG2E))[0]
    s(f'''s_and_b32 s42, s35, 2
    s_lshl_b32 s42, s42, 3
    s_lshr_b32 s43, s40, s42
    s_lshl_b32 s43, s43, 16
    s_mov_b32 s48, {fb(LOG2E)}
    v_mov_b32 v39, s43
    v_mul_f32 v38, s48, v39
    v_fma_f32 v40, s48, v39, -v38
    v_fmac_f32 v40, {fb(lo)}, v39
    v_exp_f32 v38, v38
    v_mul_f32 v40, {fb(math.log(2))}, v40
    v_fmac_f32 v38, v38, v40''')
    bf16r(s, 'v38', 'v38')
    s(f'''s_and_b32 s42, s35, 3
    s_mul_i32 s42, s42, {GS}
    s_add_u32 s54, s42, {HI if isB else 0}
    v_lshl_add_u32 v33, v1, 3, s54
    v_lshlrev_b32 v34, 16, v29
    v_and_b32 v35, 0xffff0000, v29
    v_mul_f32 v34, s48, v34
    v_mul_f32 v35, s48, v35
    v_exp_f32 v34, v34
    v_exp_f32 v35, v35
    v_lshlrev_b32 v36, 16, v30
    v_and_b32 v37, 0xffff0000, v30
    v_cvt_pk_bf16_f32 v35, v34, v35
    v_mul_f32 v36, v38, v36
    v_mul_f32 v37, v38, v37
    v_lshlrev_b32 v34, 16, v35
    v_and_b32 v35, 0xffff0000, v35
    v_mul_f32 v34, v38, v34
    v_mul_f32 v35, v38, v35
    v_mul_f32 v36, {fb((-1 if isB else 1)/(2*math.pi))}, v36
    v_mul_f32 v37, {fb((-1 if isB else 1)/(2*math.pi))}, v37
    v_mul_f32 v34, {fb(-LOG2E)}, v34
    v_mul_f32 v35, {fb(-LOG2E)}, v35''')
def cpow(s, d, p):
    s(f'''v_mul_f32 v60, {fb(p)}, v34
    v_mul_f32 v61, {fb(p)}, v35
    v_mul_f32 v62, {fb(p)}, v36
    v_mul_f32 v63, {fb(p)}, v37
    v_exp_f32 v60, v60
    v_exp_f32 v61, v61
    v_fract_f32 v62, v62
    v_fract_f32 v63, v63
    v_cos_f32 v{d}, v62
    v_cos_f32 v{d+1}, v63
    v_sin_f32 v{d+2}, v62
    v_sin_f32 v{d+3}, v63
    v_pk_mul_f32 {V(d,2)}, {V(d,2)}, v[60:61]
    v_pk_mul_f32 {V(d+2,2)}, {V(d+2,2)}, v[60:61]''')
def cmul(d, a, m, t):
    return [f'v_pk_mul_f32 {V(t,2)}, {V(a,2)}, {V(m,2)}', f'v_pk_mul_f32 {V(t+2,2)}, {V(a,2)}, {V(m+2,2)}',
            f'v_pk_fma_f32 {V(d,2)}, {V(a+2,2)}, {V(m+2,2)}, {V(t,2)} neg_lo:[1,0,0] neg_hi:[1,0,0]',
            f'v_pk_fma_f32 {V(d+2,2)}, {V(a+2,2)}, {V(m,2)}, {V(t+2,2)}']
cw = [0, 0]
def crow(a, row, k=0):
    c = 128 + 6 * k + 2 * (cw[k] % 3); cw[k] += 1
    return [f'v_cvt_pk_bf16_f32 v{c}, v{a}, v{a+1}', f'v_cvt_pk_bf16_f32 v{c+1}, v{a+2}, v{a+3}', f'ds_write_b64 v33, {V(c,2)} offset:{row*ROW}']
def zipl(a, b):
    o = []
    for i in range(max(len(a), len(b))): o += a[i:i+1] + b[i:i+1]
    return o
def kg_lo(s):
    cpow(s, 40, 8); cpow(s, 48, 128)
    s('''v_mov_b32 v128, 0x3f803f80
    v_mov_b32 v129, 0
    ds_write_b64 v33, v[128:129]'''); cw[0] = 1
    a = crow(40, 1) + cmul(44, 40, 40, 52) + crow(44, 2); b = crow(48, 16, 1)
    for j in range(3, 16): a += cmul(44, 44, 40, 52) + crow(44, j)
    for j in range(17, 32): b += cmul(48, 48, 40, 56) + crow(48, j, 1)
    o = zipl(a, b); s(o)
HROW = {256:8, 258:9, 512:10, 768:11, 260:12, 262:13, 516:14, 772:15, 1024:16, 1280:17, 1536:18, 1792:19, 2048:24}
def kg_hi(s):
    cpow(s, 40, 1); cpow(s, 44, 256)
    s('''v_add_f32 v38, v38, v38
    v_lshlrev_b32 v48, 16, v31
    v_and_b32 v49, 0xffff0000, v31
    v_lshlrev_b32 v50, 16, v32
    v_and_b32 v51, 0xffff0000, v32
    v_mul_f32 v48, v38, v48
    v_mul_f32 v49, v38, v49
    v_mul_f32 v50, -v38, v50
    v_mul_f32 v51, -v38, v51''')
    s(cmul(52, 48, 44, 60))
    a = crow(48, 0); b = crow(52, 8, 1)
    for p in range(1, 8):
        a += cmul(48, 48, 40, 56) + crow(48, p)
        if p in (2, 6): a += cmul(92, 48, 44, 56) + crow(92, HROW[256+p])
        if p == 4: a += cmul(140, 48, 44, 56) + crow(140, 12)
    for p in range(512, 2049, 256): b += cmul(52, 52, 44, 60) + crow(52, HROW[p], 1)
    b += cmul(140, 140, 44, 60) + crow(140, 14, 1) + cmul(140, 140, 44, 60) + crow(140, 15, 1)
    s(zipl(a, b))
def kg_mfma(s):
    s(f'''v_and_b32 v11, 31, v1
    v_lshrrev_b32 v12, 5, v1
    v_mul_u32_u24 v13, {ROW}, v11
    v_lshl_add_u32 v13, v12, 4, v13
    v_add_u32 v13, s54, v13
    v_lshlrev_b32 v12, 9, v12
    v_lshl_add_u32 v12, v11, 2, v12
    v_add_u32 v12, s54, v12''')
def kg_mfma2(s):
    rd = lambda k: [f'ds_read_b128 {V(80+8*(k%6),4)}, v13 offset:{HI+32*k}', f'ds_read_b128 {V(84+8*(k%6),4)}, v13 offset:{32*k}']
    for k in range(5): s(rd(k))
    for k in range(16):
        if k + 5 < 16: s(rd(k + 5))
        s(f'v_mfma_f32_32x32x16_bf16 v[64:79], {V(80+8*(k%6),4)}, {V(84+8*(k%6),4)}, {"0" if k==0 else "v[64:79]"}')
    for r, p in enumerate([0,1,2,3,256,258,512,768,1024,1280,1536,1792,2048]):
        s(f'ds_write_b32 v12, v{64+r} offset:{((p>>8)*8+(p&7))*128}')
def expand(s):
    for e in range(9): s(f'ds_read2st64_b32 {V(12+2*e,2)}, v{2+e} offset0:0 offset1:{GS//256}')
    s(f'''v_and_b32 v11, 255, v0
    s_lshr_b32 s42, s35, 2
    s_mul_i32 s42, s42, {RCH}
    s_add_u32 s42, s42, {RB}
    v_cmp_ne_u32 vcc, 255, v11
    v_lshl_add_u32 v11, v11, 4, s42''')
    for e in range(9): s(f'v_add_f32 v{12+2*e}, v{12+2*e}, v{13+2*e}')
    s('v_cndmask_b32 v28, 0, v28, vcc')
    for i in range(4): s(f'v_cvt_pk_bf16_f32 v{4+i}, v{12+4*i}, v{14+4*i}')
    s('ds_write_b128 v11, v[4:7]')
    for i in range(4): s(f'v_cvt_pk_bf16_f32 v{32+i}, v{14+4*i}, v{16+4*i}')
    s(f'ds_write_b128 v11, v[32:35] offset:{RCP}')
def zero_pads(s):
    s(f'''s_mul_i32 s42, s35, {RCP}
    s_add_u32 s42, s42, {RB+4096}
    v_and_b32 v11, 7, v1
    v_lshl_add_u32 v11, v11, 2, s42
    v_mov_b32 v14, 0
    v_mov_b32 v15, 0
    ds_write_b32 v11, v14
    s_and_b32 s42, s35, 1
    s_mul_i32 s42, s42, {UCH}
    s_add_u32 s42, s42, {UB}
    v_min_u32 v11, 59, v1
    v_lshl_add_u32 v11, v11, 3, s42
    ds_write_b64 v11, v[14:15]''')
def spin_begin(s, l):
    s(f's_mov_b32 s55, {SPIN}'); s.label(l)
def spin_end(s, l):
    s(f'''s_cbranch_vccz {l}x
    s_sub_u32 s55, s55, 1
    s_cmp_lg_u32 s55, 0
    s_cbranch_scc1 {l}'''); s.label(l + 'x')
def ug_addr(s):
    s(f'''v_and_b32 v36, 255, v0
    v_lshrrev_b32 v37, 2, v36
    v_and_b32 v38, 3, v36
    v_mul_u32_u24 v37, 14336, v37
    v_lshl_add_u32 v37, v38, 4, v37
    v_lshlrev_b32 v38, 4, v36
    s_and_b32 s42, s37, 1
    s_mul_i32 s42, s42, 7168
    s_lshr_b32 s43, s37, 1
    s_lshl_b32 s43, s43, 6
    s_add_u32 s42, s42, s43
    s_add_u32 s42, s42, {XT}''')
    base(s, 56, 32, 's42')
    for i in range(1, 4): base(s, 56 + 2*i, 54 + 2*i, 64*14336)
    base(s, 64, 32, STATS + 4096); base(s, 66, 32, STATS + 12288)
def ug_issue(s):
    for i in range(4):
        s(f'global_load_dwordx4 {V(64+4*i,4)}, v38, s[{64+2*(i>>1)}:{65+2*(i>>1)}] offset:{-4096 if i%2==0 else 0} sc1')
        s(f'global_load_dwordx4 {V(80+4*i,4)}, v37, s[{56+2*i}:{57+2*i}] sc1')
def ug_check(s):
    s('v_min_u32 v39, v65, v67'); s('v_max_u32 v40, v65, v67')
    for i in [4,1,5,2,6,3,7]:
        s(f'v_min3_u32 v39, v39, v{65+4*i}, v{67+4*i}'); s(f'v_max3_u32 v40, v40, v{65+4*i}, v{67+4*i}')
    s('''v_xor_b32 v39, s34, v39
    v_xor_b32 v40, s34, v40
    v_or_b32 v39, v39, v40
    v_cmp_ne_u32 vcc, 0, v39''')
def ubuild(s):
    s(f'v_lshlrev_b32 v36, 2, v36'); s(f'v_add_u32 v39, {UB+480}, v36')
    for t in range(8):
        ms = 64 + 2*t; x = 80 + 2*t
        s(f'''v_and_b32 v{ms+1}, 0xffff0000, v{ms}
        v_lshlrev_b32 v{ms}, 16, v{ms}
        v_rcp_f32 v{ms+1}, v{ms+1}
        v_lshlrev_b32 v{96+2*t}, 16, v{x}
        v_and_b32 v{97+2*t}, 0xffff0000, v{x}
        v_pk_add_f32 {V(112+2*t,2)}, {V(96+2*t,2)}, {V(ms,2)} op_sel_hi:[1,0] neg_lo:[0,1] neg_hi:[0,1]
        v_pk_mul_f32 {V(112+2*t,2)}, {V(112+2*t,2)}, {V(ms,2)} op_sel:[0,1]''')
        if t & 1:
            i = t >> 1
            s(f'''v_cvt_pk_bf16_f32 v{48+2*i}, v{110+2*t}, v{112+2*t}
            v_cvt_pk_bf16_f32 v{49+2*i}, v{111+2*t}, v{113+2*t}
            ds_write_b32 v39, v{48+2*i} offset:{1024*i}
            ds_write_b32 v39, v{49+2*i} offset:{1024*i+UCH}''')
def vbuild(s):
    s(f'''s_lshl_b32 s42, s41, 16
    s_and_b32 s43, s41, 0xffff0000
    v_and_b32 v36, 255, v0
    v_lshrrev_b32 v37, 7, v36
    v_mul_u32_u24 v37, 1280, v37
    v_bfe_u32 v38, v36, 1, 2
    v_mul_u32_u24 v38, 320, v38
    v_add_u32 v37, v37, v38
    v_bfe_u32 v38, v36, 3, 4
    v_lshl_add_u32 v37, v38, 4, v37
    v_and_b32 v38, 1, v36
    v_lshl_add_u32 v37, v38, 3, v37''')
    for i in range(4):
        for ch in range(2):
            d = 64 + 4*i + 2*ch
            s(f'''v_fma_f32 v{d}, v{112+4*i+ch}, s{42+ch}, v{96+4*i+ch}
            v_fma_f32 v{d+1}, v{114+4*i+ch}, s{42+ch}, v{98+4*i+ch}
            ds_write_b64 v37, {V(d,2)} offset:{VB+10240*ch+2560*i}''')
def conv_addr(s):
    s(f'''v_and_b32 v11, 15, v1
    v_lshrrev_b32 v12, 4, v1
    s_lshr_b32 s42, s35, 1
    s_and_b32 s43, s35, 1
    s_mul_i32 s48, s42, {RCH}
    s_lshl_b32 s49, s43, 8
    s_sub_u32 s48, s48, s49
    s_add_u32 s48, s48, {RB + 2*(2031 - 32*(8+3)) }
    v_lshlrev_b32 v13, 3, v12
    v_sub_u32 v13, v13, v11
    v_and_b32 v14, 1, v11
    v_mul_u32_u24 v14, {RCP-2}, v14
    v_lshl_add_u32 v13, v13, 1, s48
    v_add_u32 v13, {RCP-2}, v13
    v_sub_u32 v2, v13, v14
    v_subrev_u32 v3, 1024, v2
    v_subrev_u32 v4, 2048, v2
    v_subrev_u32 v5, 3072, v2
    s_mul_i32 s48, s42, {UCH}
    s_sub_u32 s48, s48, s49
    s_add_u32 s48, s48, {UB + 448 - 192}
    v_lshlrev_b32 v6, 5, v11
    v_lshl_add_u32 v6, v12, 4, v6
    v_add_u32 v6, s48, v6
    s_mul_i32 s48, s35, 10240
    v_mul_u32_u24 v7, 320, v12
    v_lshl_add_u32 v7, v11, 4, v7
    v_add_u32 v7, s48, v7''')
def conv(s, fill):
    NA, NB = 5, 10
    mf = [(r, sg, mu) for r in range(4) for sg in range(8) for mu in range(8 - sg)]
    last = {}
    for n, (r, sg, mu) in enumerate(mf): last[('A', r, sg)] = n; last[('B', r, mu)] = n
    order = []
    for (r, sg, mu) in mf:
        for k in (('A', r, sg), ('B', r, mu)):
            if k not in order: order.append(k)
    qa = [k for k in order if k[0] == 'A']; qb = [k for k in order if k[0] == 'B']
    fa = [16 + 4*i for i in range(NA)]; fbb = [96 + 4*i for i in range(NB)]; slot = {}
    def ld(k):
        if k[0] == 'A':
            d = slot[k] = fa.pop(0); o = 128*(1 - (k[2] & 1)) + 16*(3 - k[1]); a = 2 + (k[2] >> 1)
            return [f'ds_read2_b32 {V(d,2)}, v{a} offset0:{o} offset1:{o+1}', f'ds_read2_b32 {V(d+2,2)}, v{a} offset0:{o+2} offset1:{o+3}']
        d = slot[k] = fbb.pop(0)
        return [f'ds_read_b128 {V(d,4)}, v6 offset:{512*k[2] + 64*(3-k[1])}']
    s(ld(qa.pop(0)))
    for i in range(8): s(ld(qb.pop(0)))
    items = []; seen = set()
    for n, (r, sg, mu) in enumerate(mf):
        R = sg + mu; acc = V(64 + 4*R, 4)
        it = [f'v_mfma_f32_16x16x32_bf16 {acc}, {V(slot[("A",r,sg)],4)}, {V(slot[("B",r,mu)],4)}, {acc if R in seen else 0}']
        seen.add(R)
        if last[('A', r, sg)] == n: fa.append(slot[('A', r, sg)])
        if last[('B', r, mu)] == n: fbb.append(slot[('B', r, mu)])
        if qa and fa: it += ld(qa.pop(0))
        if qb and fbb: it += ld(qb.pop(0))
        items.append(it)
    s(weave(items, fill, 2, 114))
    for R in range(8): s(f'ds_write_b128 v7, {V(64+4*R,4)} offset:{YB+1280*R}')
def epilogue(s):
    s(f'''v_and_b32 v11, 255, v0
    v_lshrrev_b32 v12, 5, v11
    v_mul_u32_u24 v12, 1280, v12
    v_and_b32 v13, 1, v11
    v_mul_u32_u24 v13, 640, v13
    v_add_u32 v12, v12, v13
    v_bfe_u32 v13, v11, 1, 4
    v_lshl_add_u32 v12, v13, 4, v12
    s_lshr_b32 s42, s35, 2
    s_mul_i32 s43, s42, 10240
    v_add_u32 v13, s43, v12
    v_add_u32 v12, s43, v13
    v_lshlrev_b32 v11, 4, v0
    s_lshl_b32 s42, s37, 13
    s_add_u32 s42, s42, {HT}''')
    base(s, 46, 32, 's42')
def epilogue2(s):
    for h in range(2):
        s(f'''ds_read_b128 {V(16+4*h,4)}, v13 offset:{VB+320*h}
        ds_read_b128 {V(24+4*h,4)}, v12 offset:{YB+320*h}
        ds_read_b128 {V(32+4*h,4)}, v12 offset:{YB+10240+320*h}''')
    for i in range(4):
        s(f'''v_pk_add_f32 {V(24+2*i,2)}, {V(24+2*i,2)}, {V(32+2*i,2)}
        v_pk_add_f32 {V(16+2*i,2)}, {V(16+2*i,2)}, {V(24+2*i,2)}
        v_cvt_pk_bf16_f32 v{40+i}, v{16+2*i}, v{17+2*i}
        v_min_u32 v{40+i}, -2, v{40+i}''')
    s('global_store_dwordx4 v11, v[40:43], s[46:47] sc1')
```

```python
from gen1 import *
import gen1
def flag_addr(s, d, off, unit):
    s(f'''s_lshl_b32 s42, {unit}, 9
    s_add_u32 s42, s42, {off}'''); base(s, d, 32, 's42')
    s(f'''v_and_b32 v44, 3, v1
    v_lshlrev_b32 v44, 7, v44
    global_load_dword v45, v44, s[{d}:{d+1}] sc1''')
def flag_wait(s, d, l):
    s('v_cmp_ne_u32 vcc, s34, v45')
    def body(s):
        spin_begin(s, l)
        s(f'global_load_dword v45, v44, s[{d}:{d+1}] sc1'); s('v_cmp_ne_u32 vcc, s34, v45')
        spin_end(s, l)
    s.cond('s_cbranch_vccz', body)
def w1_addr(s):
    s('''s_lshl_b32 s50, s39, 3
    s_add_u32 s50, s50, s35''')
    flag_addr(s, 52, W1F, 's50')
def w1_loads():
    o = L(f'''s_mul_i32 s42, s50, 28672
    s_add_u32 s42, s42, {W1S+4096}
    s_add_u32 s52, s32, s42
    s_addc_u32 s53, s33, 0
    v_lshlrev_b32 v10, 4, v1''')
    o = [o]
    for k in range(28):
        it = [f'global_load_dwordx4 {V(144+4*k,4)}, v10, s[52:53] offset:{1024*(k%8)-4096} sc1']
        if k % 8 == 7: it += ['s_add_u32 s52, s52, 8192', 's_addc_u32 s53, s53, 0']
        o.append(it)
    return o
def part_base(s, d, dst, slot, extra=0):
    s(f'''s_mul_i32 s42, s38, 7
    s_add_u32 s42, s42, {dst}
    s_mul_i32 s42, s42, 49152
    s_add_u32 s42, s42, {PART + slot*8192 + extra}'''); base(s, d, 32, 's42')
def prefill(s):
    part_base(s, 56, 's39', 0, 4096)
    s('''v_and_b32 v11, 255, v0
    v_lshlrev_b32 v11, 4, v11
    v_mov_b32 v60, -1
    v_mov_b32 v61, -1
    v_mov_b32 v62, -1
    v_mov_b32 v63, -1''')
    for i in range(12):
        s(f'global_store_dwordx4 v11, v[60:63], s[56:57] offset:{-4096 if i%2==0 else 0} sc1')
        if i % 2 and i < 11: base(s, 56, 56, 8192)
def colsum(s):
    s('''s_lshl_b32 s42, s50, 6
    v_and_b32 v12, 31, v1
    v_lshl_add_u32 v12, v12, 1, s42
    global_load_ushort v13, v12, s[22:23]
    v_mov_b32 v14, 0x3f803f80
    v_mov_b32 v16, 0
    v_mov_b32 v17, 0''')
    for i in range(112): s(f'v_dot2c_f32_bf16 v{16+(i&1)}, v{144+i}, v14')
    s('''v_add_f32 v16, v16, v17
    v_mov_b32 v17, v16
    v_permlane32_swap_b32 v16, v17
    v_add_f32 v16, v16, v17
    v_cvt_pk_bf16_f32 v9, v16, v16
    v_and_b32 v17, 0xffff0000, v9
    v_sub_f32 v16, v16, v17
    v_cvt_pk_bf16_f32 v10, v16, 0
    v_lshl_or_b32 v8, v13, 16, v13
    v_mov_b32 v11, 0
    v_cmp_gt_u32 vcc, 32, v1
    v_cndmask_b32 v8, 0, v8, vcc
    v_cndmask_b32 v9, 0, v9, vcc
    v_cndmask_b32 v10, 0, v10, vcc''')
def hg_addr(s):
    s(f'''v_lshrrev_b32 v12, 3, v0
    v_and_b32 v13, 7, v0
    v_lshlrev_b32 v2, 12, v12
    v_lshl_add_u32 v2, v13, 4, v2
    v_lshrrev_b32 v14, 2, v13
    v_mul_u32_u24 v14, {HH}, v14
    v_and_b32 v13, 3, v13
    v_lshl_add_u32 v14, v13, 4, v14
    v_lshl_add_u32 v3, v12, 6, v14
    v_add_u32 v3, {HB}, v3
    s_lshl_b32 s42, s38, 7
    s_add_u32 s42, s42, {HT}''')
    base(s, 56, 32, 's42')
    for i in range(1, 7): base(s, 56 + 2*i, 54 + 2*i, 64*4096)
    tr_addr(s, 'v4', 'v12'); s(f'v_add_u32 v4, {HB}, v4')
def max_chain(s, d, a, n):
    s(f'v_max_u32 {d}, v{a}, v{a+1}')
    for i in range(2, n, 2): s(f'v_max3_u32 {d}, {d}, v{a+i}, v{a+i+1}')
    s(f'v_cmp_eq_u32 vcc, -1, {d}')
def hgather(s, l):
    spin_begin(s, l)
    for i in range(7): s(f'global_load_dwordx4 {V(64+4*i,4)}, v2, s[{56+2*i}:{57+2*i}] sc1')
    max_chain(s, 'v12', 64, 28)
    spin_end(s, l)
    for i in range(7): s(f'ds_write_b128 v3, {V(64+4*i,4)} offset:{4096*i}')
def w2_setup(s, isB):
    nd = 3 if isB else 4
    s('s_and_b32 s43, s35, 3')
    for k in range(nd):
        kk = k + (5 if isB else 1)
        s(f'''s_add_u32 s{46+k}, s39, {kk}
        s_cmp_ge_u32 s{46+k}, 7
        s_cselect_b32 s42, 7, 0
        s_sub_u32 s{46+k}, s{46+k}, s42
        s_mul_i32 s42, s39, 28
        s_lshl_b32 s44, s{46+k}, 2
        s_add_u32 s42, s42, s44
        s_add_u32 s42, s42, s43
        s_lshl_b32 s42, s42, 13
        s_add_u32 s42, s42, {W2S+4096}''')
        base(s, 56 + 2*k, 32, 's42')
    s('v_lshlrev_b32 v2, 4, v1')
def w2reg(n): return 96 + 4*n
def w2ld(n, nd):
    k, d = divmod(n, nd)
    return f'global_load_dwordx4 {V(w2reg(n),4)}, v2, s[{56+2*d}:{57+2*d}] offset:{1024*k-4096} sc1'
def g1(half, acc, extra=None):
    rd = lambda k: [f'ds_read_b64_tr_b16 {V(48+4*(k%4),2)}, v4 offset:{half*HH+1024*k}', f'ds_read_b64_tr_b16 {V(50+4*(k%4),2)}, v4 offset:{half*HH+1024*k+256}']
    pre = rd(0) + rd(1) + rd(2); it = []
    for k in range(28):
        x = rd(k + 3) if k + 3 < 28 else []
        x = x + [f'v_mfma_f32_32x32x16_bf16 {V(acc,16)}, {V(144+4*k,4)}, {V(48+4*(k%4),4)}, {V(acc,16) if k else 0}']
        if extra: x += extra(k)
        it.append(x)
    return pre, it
def stats_a():
    o = L(f'''s_and_b32 s42, s35, 1
    s_mul_i32 s42, s42, {HH}
    s_lshr_b32 s43, s35, 1
    s_mul_i32 s44, s43, 7168
    s_add_u32 s42, s42, s44
    v_add_u32 v5, s42, v4''')
    for k in range(7): o += [f'ds_read_b64_tr_b16 {V(16+4*k,2)}, v5 offset:{1024*k}', f'ds_read_b64_tr_b16 {V(18+4*k,2)}, v5 offset:{1024*k+256}']
    return o
def stats_b():
    o = []
    for i in range(28):
        a, b = 80 + 2*(i & 1), 81 + 2*(i & 1)
        o += [f'v_lshlrev_b32 v{a}, 16, v{16+i}', f'v_and_b32 v{b}, 0xffff0000, v{16+i}']
        if i == 0: o += ['v_mov_b32 v44, v80', 'v_mov_b32 v46, v81', 'v_mul_f32 v45, v80, v80', 'v_mul_f32 v47, v81, v81']
        else: o += [f'v_add_f32 v44, v44, v{a}', f'v_add_f32 v46, v46, v{b}', f'v_fmac_f32 v45, v{a}, v{a}', f'v_fmac_f32 v47, v{b}, v{b}']
    o += L(f'''v_add_f32 v44, v44, v46
    v_add_f32 v45, v45, v47
    s_and_b32 s42, s35, 1
    s_lshl_b32 s42, s42, 11
    s_lshr_b32 s43, s35, 1
    s_lshl_b32 s43, s43, 9
    s_add_u32 s42, s42, s43
    s_add_u32 s42, s42, {SB}
    v_lshl_add_u32 v5, v1, 3, s42
    ds_write_b64 v5, v[44:45]
    v_and_b32 v5, 31, v1
    v_lshlrev_b32 v5, 3, v5''')
    return o
K0 = -2 * math.sqrt(2 / math.pi) * LOG2E
def stats_fin(half, t, cs):
    o = [f'ds_read_b64 {V(t+2*p,2)}, v5 offset:{SB+half*2048+256*p}' for p in range(8)]
    for st in (8, 4, 2):
        for i in range(st): o.append(f'v_add_f32 v{t+i}, v{t+i}, v{t+st+i}')
    m, q, a, b, c, d = t, t+1, t+2, t+3, t+4, t+5
    r = lambda x, y: [f'v_cvt_pk_bf16_f32 v{x}, v{y}, v{y}', f'v_and_b32 v{x}, 0xffff0000, v{x}']
    o += [f'v_mul_f32 v{m}, {fb(1/448)}, v{m}', f'v_mul_f32 v{q}, {fb(1/448)}, v{q}', f'v_fma_f32 v{q}, -v{m}, v{m}, v{q}', f'v_max_f32 v{q}, 0, v{q}']
    o += r(a, q) + r(b, m) + [f'v_add_f32 v{a}, {fb(1e-5)}, v{a}'] + r(a, a) + [f'v_sqrt_f32 v{a}, v{a}', f'v_sub_f32 v{m}, v{m}, v{b}'] + r(a, a)
    o += [f'v_rcp_f32 v{c}, v{a}', f'v_mul_f32 v{m}, v{m}, v{c}', f'v_mul_f32 v{q}, v{q}, v{c}', f'v_mul_f32 v{q}, v{q}, v{c}']
    o += r(m, m) + r(q, q) + [f'v_add_f32 v{q}, {fb(1e-5)}, v{q}'] + r(q, q) + [f'v_sqrt_f32 v{q}, v{q}', f'v_fma_f32 v{b}, -v{m}, v{a}, -v{b}'] + r(q, q)
    o += [f'v_mul_f32 v{cs}, v{a}, v{q}', f'v_rcp_f32 v{c}, v{cs}'] + r(a, cs) + r(d, b)
    o += [f'v_sub_f32 v{q}, v{cs}, v{a}', f'v_sub_f32 v{m}, v{b}, v{d}', f'v_cvt_pk_bf16_f32 v12, v{a}, v{q}', f'v_cvt_pk_bf16_f32 v13, v{d}, v{m}',
          f'v_lshrrev_b32 v14, 16, v{d}', 'v_mov_b32 v15, 0',
          f'v_mul_f32 v{cs+1}, {fb(K0)}, v{c}', f'v_mul_f32 v{c}, v{c}, v{c}', f'v_mul_f32 v{c}, {fb(0.044715)}, v{c}', f'v_mul_f32 v{cs+2}, v{c}, v{cs+1}']
    return o
def gelu(acc, cs, half):
    o = []
    for u in range(4):
        T = lambda i: 16 + 4*(u & 1) + i
        for f in (lambda i: f'v_mul_f32 v{T(i)}, v{acc+4*u+i}, v{acc+4*u+i}', lambda i: f'v_fma_f32 v{T(i)}, v{T(i)}, v{cs+2}, v{cs+1}',
                  lambda i: f'v_mul_f32 v{T(i)}, v{T(i)}, v{acc+4*u+i}', lambda i: f'v_exp_f32 v{T(i)}, v{T(i)}',
                  lambda i: f'v_fma_f32 v{T(i)}, v{T(i)}, v{cs}, v{cs}', lambda i: f'v_rcp_f32 v{T(i)}, v{T(i)}',
                  lambda i: f'v_mul_f32 v{T(i)}, v{T(i)}, v{acc+4*u+i}'):
            o += [f(i) for i in range(4)]
        o += [f'v_cvt_pk_bf16_f32 v{24+2*u}, v{T(0)}, v{T(1)}', f'v_cvt_pk_bf16_f32 v{25+2*u}, v{T(2)}, v{T(3)}']
        if u & 1: o.append(f'ds_write_b128 v6, {V(22+2*u,4)} offset:{GB+(u>>1)*2048+half*512}')
    return o
def g2(half, acc, nd, own):
    rd = lambda k: [f'ds_read_b128 {V(48+8*(k&1)+4*T,4)}, v7 offset:{GB+4096*k+512*half+256*T}' for T in range(2)]
    pre = rd(0) + rd(1); it = []
    for k in range(8):
        for d in range(nd):
            for T in range(2):
                a = V(acc + 8*d + 4*T, 4)
                x = [f'v_mfma_f32_16x16x32_bf16 {a}, {V(w2reg(k*nd+d),4)}, {V(48+8*(k&1)+4*T,4)}, {a if (k or d == own) else 0}']
                if d == nd - 1 and k + 2 < 8: x.append(rd(k + 2)[T])
                it.append(x)
    return pre, it
def own_init(half, acc):
    o = [f'ds_read_b64_tr_b16 {V(32+2*T,2)}, v3 offset:{half*HH+32*T}' for T in range(2)]
    for T in range(2):
        for i in range(2):
            o += [f'v_lshlrev_b32 v{acc+4*T+2*i}, 16, v{32+2*T+i}', f'v_and_b32 v{acc+4*T+2*i+1}, 0xffff0000, v{32+2*T+i}']
        o += [f'v_add_f32 v{acc+4*T+i}, v{acc+4*T+i}, v{40+i}' for i in range(4)]
    return o
def send(half, acc, nd, own):
    o = []
    for d in range(nd):
        a = acc + 8*d
        if d == own:
            o += [f'ds_write_b128 v44, {V(a+4*T,4)} offset:{OB+(32*half+16*T)*272}' for T in range(2)]; continue
        t = 16 + 4*(d & 1)
        o += [f'v_cvt_pk_bf16_f32 v{t+i}, v{a+2*i}, v{a+2*i+1}' for i in range(4)]
        o += [f'v_min_u32 v{t+i}, -2, v{t+i}' for i in range(4)]
        o += [f'v_permlane16_swap_b32 v{t}, v{t+2}', f'v_permlane16_swap_b32 v{t+1}, v{t+3}']
        o += [f'global_store_dwordx4 v45, {V(t,4)}, s[{56+2*d}:{57+2*d}] offset:{4096*half-4096} sc1']
    return o
def mlp(s, isB):
    nd = 3 if isB else 4; own = 2 if isB else -1; X = 'B' if isB else 'A'
    w2_setup(s, isB)
    flag_wait(s, 52, 'Lw2' + X)
    for n in range(12): s(w2ld(n, nd))
    s(f'''s_lshl_b32 s42, s35, 12
    v_lshrrev_b32 v12, 5, v1
    v_and_b32 v13, 31, v1
    v_lshlrev_b32 v6, 10, v12
    v_lshl_add_u32 v6, v13, 4, v6
    v_add_u32 v6, s42, v6
    v_lshrrev_b32 v12, 4, v1
    v_and_b32 v13, 15, v1
    v_lshlrev_b32 v7, 10, v12
    v_lshl_add_u32 v7, v13, 4, v7''')
    if isB:
        s(f'''s_lshl_b32 s42, s39, 2
        s_and_b32 s43, s35, 3
        s_add_u32 s42, s42, s43
        s_lshl_b32 s44, s42, 5
        v_lshl_add_u32 v14, v12, 3, s44
        global_load_dwordx2 v[92:93], v14, s[26:27]
        s_lshl_b32 s42, s42, 10
        s_add_u32 s42, s42, {HB}
        v_lshrrev_b32 v3, 2, v1
        v_lshlrev_b32 v3, 6, v3
        v_and_b32 v14, 3, v1
        v_lshl_add_u32 v3, v14, 3, v3
        v_add_u32 v3, s42, v3''')
    s.barrier(); stamp(s, 8)
    pre, it = g1(0, 64); s(pre); s(it[0]); s(stats_a()); s(weave(it[1:], stats_b(), 1, 26))
    preb, itb = g1(1, 80, lambda k: [w2ld(12 + k, nd)] if 12 + k < 8*nd else [])
    if isB:
        s([f'v_lshlrev_b32 v{40+2*i}, 16, v{92+i}' for i in range(2)] + [f'v_and_b32 v{41+2*i}, 0xffff0000, v{92+i}' for i in range(2)])
    s(preb); s.barrier(keep=True); stamp(s, 9)
    ext = lambda acc: f'v_mfma_f32_32x32x16_bf16 {V(acc,16)}, v[8:11], v[12:15], {V(acc,16)}'
    s(weave(itb[:6], stats_fin(0, 16, 36))); s(ext(64))
    s(weave(itb[6:10], stats_fin(1, 16, 44)))
    s(weave(itb[10:], gelu(64, 36, 0))); s(ext(80))
    if isB: s(own_init(0, 224 + 16))
    s.barrier(); stamp(s, 10)
    pre, it = g2(0, 224, nd, own); s(pre); s(weave(it, gelu(80, 44, 1), 2, len(it) - 4))
    for d in range(nd):
        if d != own: part_base(s, 56 + 2*d, f's{46+d}', d + (4 if isB else 0), 4096)
    s(f'''s_and_b32 s43, s35, 3
    s_lshl_b32 s42, s43, 10
    v_lshl_add_u32 v45, v1, 4, s42
    v_and_b32 v44, 15, v1
    v_mul_u32_u24 v44, 272, v44
    v_lshrrev_b32 v12, 4, v1
    v_lshl_add_u32 v44, v12, 4, v44
    s_lshl_b32 s42, s43, 6
    v_add_u32 v44, s42, v44''')
    if isB: s(own_init(1, 64 + 16))
    s.barrier(); stamp(s, 11)
    pre, it = g2(1, 64, nd, own); s(pre); s(weave(it, send(0, 224, nd, own), 2, len(it) // 2))
    s(send(1, 64, nd, own)); stamp(s, 12)
    part_base(s, 56, 's39', 0)
    for i in range(1, 6): base(s, 56 + 2*i, 54 + 2*i, 8192)
    s(f'''v_lshrrev_b32 v12, 3, v0
    v_and_b32 v13, 7, v0
    v_lshrrev_b32 v2, 5, v12
    v_lshlrev_b32 v2, 12, v2
    v_lshl_add_u32 v2, v13, 9, v2
    v_and_b32 v14, 31, v12
    v_lshl_add_u32 v2, v14, 4, v2
    v_mul_u32_u24 v3, 272, v12
    v_lshl_add_u32 v3, v13, 5, v3
    v_mul_u32_u24 v4, 896, v12
    v_lshl_add_u32 v4, v13, 4, v4
    s_mul_i32 s42, s38, 57344
    s_lshl_b32 s43, s39, 7
    s_add_u32 s42, s42, s43''')
    base(s, 46, 28, 's42')
    s.barrier()
    s(f'ds_read_b128 v[24:27], v3 offset:{OB}'); s(f'ds_read_b128 v[28:31], v3 offset:{OB+16}')
    s.wait(vm=0); stamp(s, 13)
    spin_begin(s, 'Lfin' + X)
    for i in range(6): s(f'global_load_dwordx4 {V(96+4*i,4)}, v2, s[{56+2*i}:{57+2*i}] sc1')
    max_chain(s, 'v12', 96, 24)
    spin_end(s, 'Lfin' + X); stamp(s, 14)
    for i in range(6):
        for k in range(4):
            t = 32 + 2*(k & 1)
            s(f'''v_lshlrev_b32 v{t}, 16, v{96+4*i+k}
            v_and_b32 v{t+1}, 0xffff0000, v{96+4*i+k}
            v_pk_add_f32 {V(24+2*k,2)}, {V(24+2*k,2)}, {V(t,2)}''')
    for k in range(4): s(f'v_cvt_pk_bf16_f32 v{36+k}, v{24+2*k}, v{25+2*k}')
    s('global_store_dwordx4 v4, v[36:39], s[46:47] sc1')
def helper(s):
    w7 = lambda f: (s('s_cmp_eq_u32 s35, 7'), s.cond('s_cbranch_scc0', f)); n7 = lambda f: (s('s_cmp_eq_u32 s35, 7'), s.cond('s_cbranch_scc1', f))
    w7(st_issue); n7(xt_issue); w7(st_prefill)
    s('''s_min_u32 s50, s2, 27
    s_mul_i32 s42, s50, 57344''')
    base(s, 52, 24, 's42')
    s('''v_lshrrev_b32 v2, 3, v0
    v_and_b32 v3, 7, v0
    v_mul_u32_u24 v4, 896, v2
    v_lshl_add_u32 v4, v3, 4, v4
    v_mul_u32_u24 v5, 928, v2
    v_lshl_add_u32 v5, v3, 4, v5''')
    mktag(s); n7(xt_finish); w7(st_finish)
    s('''s_cmp_ge_u32 s2, 28
    s_cbranch_scc1 Lend''')
    for i in range(7): s(f'global_load_dwordx4 {V(96+4*i,4)}, v4, s[52:53] offset:{128*i}')
    s('''v_lshrrev_b32 v2, 5, v1
    v_bfe_u32 v3, v1, 2, 3
    v_lshl_add_u32 v2, v2, 4, v3
    v_mul_u32_u24 v2, 928, v2
    v_and_b32 v3, 3, v1
    v_lshl_add_u32 v2, v3, 3, v2
    s_and_b32 s42, s35, 1
    s_lshr_b32 s43, s35, 1
    s_mul_i32 s44, s42, 29696
    s_mul_i32 s45, s43, 224
    s_add_u32 s44, s44, s45
    v_add_u32 v2, s44, v2
    s_lshl_b32 s44, s2, 1
    s_add_u32 s44, s44, s42
    s_lshr_b32 s45, s44, 3
    s_and_b32 s44, s44, 7
    s_mul_i32 s45, s45, 28
    s_mul_i32 s43, s43, 7
    s_add_u32 s45, s45, s43
    s_lshl_b32 s45, s45, 3
    s_add_u32 s45, s45, s44
    s_lshl_b32 s45, s45, 10''')
    s(f's_add_u32 s45, s45, {W2S}'); base(s, 52, 32, 's45'); s('v_lshlrev_b32 v3, 4, v1')
    for i in range(7): s(f'ds_write_b128 v5, {V(96+4*i,4)} offset:{128*i}')
    s.barrier()
    for i in range(7):
        s(f'ds_read_b64_tr_b16 {V(128+4*i,2)}, v2 offset:{32*i}'); s(f'ds_read_b64_tr_b16 {V(130+4*i,2)}, v2 offset:{32*i+8*928}')
    for i in range(7):
        s(f'global_store_dwordx4 v3, {V(128+4*i,4)}, s[52:53] sc1')
        if i < 6: base(s, 52, 52, 8192)
    s.wait(vm=0); s.barrier()
    s(f'''s_cmp_lg_u32 s35, 0
    s_cbranch_scc1 Lend
    s_lshl_b32 s42, s2, 7
    s_add_u32 s42, s42, {W2F}'''); base(s, 52, 32, 's42')
    s('''v_mov_b32 v2, 0
    v_mov_b32 v3, s34
    s_mov_b64 exec, 1
    global_store_dword v2, v3, s[52:53] sc1
    s_endpgm''')
```

```python
import sys
from gen2 import *
NAME = 'sequential_preLN__ssm_conv_s4d__mixer_channel_mlp__prompt'
def dump_stamps(s):
    if not gen1.STAMP: return
    stamp(s, 15)
    s('''s_lshl_b32 s42, s2, 3
    s_add_u32 s42, s42, s35
    s_lshl_b32 s42, s42, 6''')
    s(f's_add_u32 s42, s42, {DBG}'); base(s, 46, 32, 's42'); s('v_mov_b32 v2, 0')
    for i in range(16): s(f'v_mov_b32 v{16+i}, s{70+2*i}')
    s('s_mov_b64 exec, 1')
    for i in range(4): s(f'global_store_dwordx4 v2, {V(16+4*i,4)}, s[46:47] offset:{16*i}')
def tail(s, isB):
    X = 'B' if isB else 'A'
    s.barrier(); stamp(s, 5)
    epilogue2(s); hg_addr(s); flag_addr(s, 52, W2F, J); colsum(s)
    s.wait(vm=0); stamp(s, 6)
    hgather(s, 'Lhg' + X); stamp(s, 7)
    if not isB:
        def ep(s):
            s('''s_xor_b32 s42, s34, 0x5bd1e995
            s_add_u32 s42, s42, 1
            v_mov_b32 v12, 0
            v_mov_b32 v13, s42
            s_mov_b64 exec, 1
            global_store_dword v12, v13, s[32:33] sc1
            s_mov_b64 exec, -1''')
        s('''s_or_b32 s42, s36, s35
        s_cmp_eq_u32 s42, 0'''); s.cond('s_cbranch_scc0', ep)
    mlp(s, isB); dump_stamps(s); s('s_endpgm')
def build():
    p = S(); prologue(p)
    p('''s_cmp_lt_u32 s2, 32
    s_cbranch_scc1 Lhelper
    s_cmp_ge_u32 s35, 4
    s_cbranch_scc1 LB''')
    a = p.fork(); b = p.fork(); h = p.fork()
    s = a
    xt_issue(s); par_issue(s, False); exp_addr(s); mktag(s); xt_finish(s); stamp(s, 1)
    kg_setup(s, False); kg_lo(s); kg_mfma(s); s.barrier(); stamp(s, 2)
    kg_mfma2(s); zero_pads(s); w1_addr(s); s.barrier(); stamp(s, 3)
    expand(s); conv_addr(s); flag_wait(s, 52, 'Lw1A'); s.barrier(); stamp(s, 4)
    conv(s, w1_loads()); epilogue(s); tail(s, False)
    s = b; s.label('LB')
    def on(w, f, ne=False): s(f's_cmp_eq_u32 s35, {w}'); s.cond('s_cbranch_scc1' if ne else 's_cbranch_scc0', f)
    on(7, st_issue); on(7, xt_issue, True); par_issue(s, True); on(6, w1_issue); on(7, st_prefill)
    exp_addr(s); mktag(s); on(7, xt_finish, True); on(7, st_finish); on(6, w1_unit); stamp(s, 1)
    kg_setup(s, True); kg_hi(s); on(6, w1_flag); ug_addr(s); s.barrier(); stamp(s, 2)
    ug_issue(s); w1_addr(s); s.barrier(); stamp(s, 3)
    expand(s); ug_check(s)
    def retry(s):
        spin_begin(s, 'Lug'); ug_issue(s); ug_check(s); spin_end(s, 'Lug')
    s.cond('s_cbranch_vccz', retry)
    ubuild(s); s.barrier(); stamp(s, 4)
    prefill(s); flag_wait(s, 52, 'Lw1B'); s(w1_loads()); vbuild(s); epilogue(s); s.wait(vm=28)
    tail(s, True)
    h.label('Lhelper'); helper(h)
    ref = open(f'cdna_kernels/{NAME}.s.ref').read().split('\n')
    hdr = [l for l in ref if l.startswith(';') and '@launch' not in l]
    o = hdr + [f'; @launch grid=(256,1,1) block=(512,1,1) lds={LDS}', '.amdgcn_target "amdgcn-amd-amdhsa--gfx950"', '.text',
        f'.globl {NAME}_kernel', '.p2align 8', f'.type {NAME}_kernel,@function', f'{NAME}_kernel:']
    o += p.out + a.out + b.out + h.out + ['Lend:', '  s_endpgm']
    o += ref[ref.index('.section .rodata,"a"'):]
    print('nops', a.nn, b.nn, h.nn, 'lines', len(a.out), len(b.out), len(h.out), file=sys.stderr)
    return '\n'.join(o)
if __name__ == '__main__':
    gen1.STAMP = 'stamp' in sys.argv
    open(sys.argv[1], 'w').write(build())
```

```python
import sys
from gen2 import *
NAME = 'sequential_preLN__ssm_conv_s4d__mixer_channel_mlp__prompt'
DBGW = None
def dump_stamps(s):
    if not gen1.STAMP: return
    stamp(s, 15)
    s('s_memtime s[48:49]'); s('s_sub_u32 s48, s48, s18')
    if DBGW is not None:
        def dd(s):
            for i in range(1, 16): s(f's_sub_u32 s42, s{70+2*i}, s70'); s(f'v_mov_b32 v{15+i}, s42')
            s('v_mov_b32 v31, s48'); s('v_mov_b32 v2, 0'); s('s_mov_b64 exec, 1')
            for i in range(4): s(f'global_store_dwordx4 v2, {V(16+4*i,4)}, s[30:31] offset:{16*i}')
            s('s_mov_b64 exec, -1')
        s(f'''s_lshl_b32 s42, s2, 3
        s_add_u32 s42, s42, s35
        s_cmp_eq_u32 s42, {DBGW}'''); s.cond('s_cbranch_scc0', dd)
    s('''s_lshl_b32 s42, s2, 3
    s_add_u32 s42, s42, s35
    s_lshl_b32 s42, s42, 6''')
    s(f's_add_u32 s42, s42, {DBG}'); base(s, 46, 32, 's42'); s('v_mov_b32 v2, 0')
    for i in range(16): s(f'v_mov_b32 v{16+i}, s{70+2*i}')
    s('s_mov_b64 exec, 1')
    for i in range(4): s(f'global_store_dwordx4 v2, {V(16+4*i,4)}, s[46:47] offset:{16*i}')
def tail(s, isB):
    X = 'B' if isB else 'A'
    s.barrier(); stamp(s, 5)
    epilogue2(s); hg_addr(s); flag_addr(s, 52, W2F, J); colsum(s)
    s.wait(vm=0); stamp(s, 6)
    hgather(s, 'Lhg' + X); stamp(s, 7)
    if not isB:
        def ep(s):
            s('''s_xor_b32 s42, s34, 0x5bd1e995
            s_add_u32 s42, s42, 1
            v_mov_b32 v12, 0
            v_mov_b32 v13, s42
            s_mov_b64 exec, 1
            global_store_dword v12, v13, s[32:33] sc1
            s_mov_b64 exec, -1''')
        s('''s_or_b32 s42, s36, s35
        s_cmp_eq_u32 s42, 0'''); s.cond('s_cbranch_scc0', ep)
    mlp(s, isB); dump_stamps(s); s('s_endpgm')
def build():
    p = S(); prologue(p)
    if gen1.STAMP: p('s_memtime s[18:19]')
    p('''s_cmp_lt_u32 s2, 32
    s_cbranch_scc1 Lhelper
    s_cmp_ge_u32 s35, 4
    s_cbranch_scc1 LB''')
    a = p.fork(); b = p.fork(); h = p.fork()
    s = a
    xt_issue(s); par_issue(s, False); exp_addr(s); mktag(s); xt_finish(s); stamp(s, 1)
    kg_setup(s, False); kg_lo(s); kg_mfma(s); s.barrier(); stamp(s, 2)
    kg_mfma2(s); zero_pads(s); w1_addr(s); s.barrier(); stamp(s, 3)
    expand(s); conv_addr(s); flag_wait(s, 52, 'Lw1A'); s.barrier(); stamp(s, 4)
    conv(s, w1_loads()); epilogue(s); tail(s, False)
    s = b; s.label('LB')
    def on(w, f, ne=False): s(f's_cmp_eq_u32 s35, {w}'); s.cond('s_cbranch_scc1' if ne else 's_cbranch_scc0', f)
    on(7, st_issue); on(7, xt_issue, True); par_issue(s, True); on(6, w1_issue); on(7, st_prefill)
    exp_addr(s); mktag(s); on(7, xt_finish, True); on(7, st_finish); on(6, w1_unit); stamp(s, 1)
    kg_setup(s, True); kg_hi(s); on(6, w1_flag); ug_addr(s); s.barrier(); stamp(s, 2)
    ug_issue(s); w1_addr(s); s.barrier(); stamp(s, 3)
    expand(s); ug_check(s)
    def retry(s):
        spin_begin(s, 'Lug'); ug_issue(s); ug_check(s); spin_end(s, 'Lug')
    s.cond('s_cbranch_vccz', retry)
    ubuild(s); s.barrier(); stamp(s, 4)
    prefill(s); flag_wait(s, 52, 'Lw1B'); s(w1_loads()); vbuild(s); epilogue(s); s.wait(vm=28)
    tail(s, True)
    h.label('Lhelper'); helper(h)
    ref = open(f'cdna_kernels/{NAME}.s.ref').read().split('\n')
    hdr = [l for l in ref if l.startswith(';') and '@launch' not in l]
    o = hdr + [f'; @launch grid=(256,1,1) block=(512,1,1) lds={LDS}', '.amdgcn_target "amdgcn-amd-amdhsa--gfx950"', '.text',
        f'.globl {NAME}_kernel', '.p2align 8', f'.type {NAME}_kernel,@function', f'{NAME}_kernel:']
    o += p.out + a.out + b.out + h.out + ['Lend:', '  s_endpgm']
    o += ref[ref.index('.section .rodata,"a"'):]
    print('nops', a.nn, b.nn, h.nn, 'lines', len(a.out), len(b.out), len(h.out), file=sys.stderr)
    return '\n'.join(o)
if __name__ == '__main__':
    gen1.STAMP = 'stamp' in sys.argv
    for a in sys.argv:
        if a.startswith('dbg='): DBGW = int(a[4:])
    open(sys.argv[1], 'w').write(build())
```

```python
import sys
from gen2 import *
NAME = 'sequential_preLN__ssm_conv_s4d__mixer_channel_mlp__prompt'
DBGW = None; ENC = None; NE = 0
def dump_stamps(s):
    if not gen1.STAMP: return
    stamp(s, 15)
    s('s_memtime s[48:49]'); s('s_sub_u32 s48, s48, s18')
    if DBGW is not None:
        def dd(s):
            for i in range(1, 16): s(f's_sub_u32 s42, s{70+2*i}, s70'); s(f'v_mov_b32 v{15+i}, s42')
            s('v_mov_b32 v31, s48'); s('v_mov_b32 v2, 0'); s('s_mov_b64 exec, 1')
            for i in range(4): s(f'global_store_dwordx4 v2, {V(16+4*i,4)}, s[30:31] offset:{16*i}')
            s('s_mov_b64 exec, -1')
            if ENC is not None:
                global NE; NE += 1
                s(f's_sub_u32 s42, s{70+2*ENC}, s70'); s('s_add_u32 s42, s42, 5000'); s.label(f'Lenc{NE}')
                s(f'''s_memrealtime s[44:45]
                s_sub_u32 s44, s44, s70
                s_cmp_lt_u32 s44, s42
                s_cbranch_scc1 Lenc{NE}''')
        s(f'''s_lshl_b32 s42, s2, 3
        s_add_u32 s42, s42, s35
        s_cmp_eq_u32 s42, {DBGW}'''); s.cond('s_cbranch_scc0', dd)
    s('''s_lshl_b32 s42, s2, 3
    s_add_u32 s42, s42, s35
    s_lshl_b32 s42, s42, 6''')
    s(f's_add_u32 s42, s42, {DBG}'); base(s, 46, 32, 's42'); s('v_mov_b32 v2, 0')
    for i in range(16): s(f'v_mov_b32 v{16+i}, s{70+2*i}')
    s('s_mov_b64 exec, 1')
    for i in range(4): s(f'global_store_dwordx4 v2, {V(16+4*i,4)}, s[46:47] offset:{16*i}')
def tail(s, isB):
    X = 'B' if isB else 'A'
    s.barrier(); stamp(s, 5)
    epilogue2(s); hg_addr(s); flag_addr(s, 52, W2F, J); colsum(s)
    s.wait(vm=0); stamp(s, 6)
    hgather(s, 'Lhg' + X); stamp(s, 7)
    if not isB:
        def ep(s):
            s('''s_xor_b32 s42, s34, 0x5bd1e995
            s_add_u32 s42, s42, 1
            v_mov_b32 v12, 0
            v_mov_b32 v13, s42
            s_mov_b64 exec, 1
            global_store_dword v12, v13, s[32:33] sc1
            s_mov_b64 exec, -1''')
        s('''s_or_b32 s42, s36, s35
        s_cmp_eq_u32 s42, 0'''); s.cond('s_cbranch_scc0', ep)
    mlp(s, isB); dump_stamps(s); s('s_endpgm')
def build():
    p = S(); prologue(p)
    if gen1.STAMP: p('s_memtime s[18:19]')
    p('''s_cmp_lt_u32 s2, 32
    s_cbranch_scc1 Lhelper
    s_cmp_ge_u32 s35, 4
    s_cbranch_scc1 LB''')
    a = p.fork(); b = p.fork(); h = p.fork()
    s = a
    xt_issue(s); par_issue(s, False); exp_addr(s); mktag(s); xt_finish(s); stamp(s, 1)
    kg_setup(s, False); kg_lo(s); kg_mfma(s); s.barrier(); stamp(s, 2)
    kg_mfma2(s); zero_pads(s); w1_addr(s); s.barrier(); stamp(s, 3)
    expand(s); conv_addr(s); flag_wait(s, 52, 'Lw1A'); s.barrier(); stamp(s, 4)
    conv(s, w1_loads()); epilogue(s); tail(s, False)
    s = b; s.label('LB')
    def on(w, f, ne=False): s(f's_cmp_eq_u32 s35, {w}'); s.cond('s_cbranch_scc1' if ne else 's_cbranch_scc0', f)
    on(7, st_issue); on(7, xt_issue, True); par_issue(s, True); on(6, w1_issue); on(7, st_prefill)
    exp_addr(s); mktag(s); on(7, xt_finish, True); on(7, st_finish); on(6, w1_unit); stamp(s, 1)
    kg_setup(s, True); kg_hi(s); on(6, w1_flag); ug_addr(s); s.barrier(); stamp(s, 2)
    ug_issue(s); w1_addr(s); s.barrier(); stamp(s, 3)
    expand(s); ug_check(s)
    def retry(s):
        spin_begin(s, 'Lug'); ug_issue(s); ug_check(s); spin_end(s, 'Lug')
    s.cond('s_cbranch_vccz', retry)
    ubuild(s); s.barrier(); stamp(s, 4)
    prefill(s); flag_wait(s, 52, 'Lw1B'); s(w1_loads()); vbuild(s); epilogue(s); s.wait(vm=28)
    tail(s, True)
    h.label('Lhelper'); helper(h)
    ref = open(f'cdna_kernels/{NAME}.s.ref').read().split('\n')
    hdr = [l for l in ref if l.startswith(';') and '@launch' not in l]
    o = hdr + [f'; @launch grid=(256,1,1) block=(512,1,1) lds={LDS}', '.amdgcn_target "amdgcn-amd-amdhsa--gfx950"', '.text',
        f'.globl {NAME}_kernel', '.p2align 8', f'.type {NAME}_kernel,@function', f'{NAME}_kernel:']
    o += p.out + a.out + b.out + h.out + ['Lend:', '  s_endpgm']
    o += ref[ref.index('.section .rodata,"a"'):]
    print('nops', a.nn, b.nn, h.nn, 'lines', len(a.out), len(b.out), len(h.out), file=sys.stderr)
    return '\n'.join(o)
if __name__ == '__main__':
    gen1.STAMP = 'stamp' in sys.argv
    for a in sys.argv:
        if a.startswith('dbg='): DBGW = int(a[4:])
        if a.startswith('enc='): ENC = int(a[4:])
    open(sys.argv[1], 'w').write(build())
```

```python
from dsl import *
import struct, math
def fb(x): return hex(struct.unpack('<I', struct.pack('<f', x))[0])
def V(a, n): return f'v[{a}:{a+n-1}]'
W1F, W2F, STATS, XT, W1S, W2S, HT, PART, DBG = 4096, 32768, 65536, 131072, 0x400000, 0x600000, 0x800000, 0xA00000, 0x2000000
GS, ROW, HI = 30208, 528, 16896
RB, RCH, RCP = 120832, 8320, 4160
UB, UCH = 137472, 4576
YB, VB = 0, 40960
HB, HH = 61440, 28736
GB, OB, SB = 0, 32768, 50176
LDS = 146688
SPIN = 20000
LOG2E = 1.4426950408889634
TAG = 's34'; W = 's35'; C = 's37'; TILE = 's38'; J = 's39'
def base(s, d, src, off):
    s(f's_add_u32 s{d}, s{src}, {off}'); s(f's_addc_u32 s{d+1}, s{src+1}, 0')
STAMP = False
SEL = list(range(16))
def stamp(s, n):
    if STAMP and n in SEL:
        n = SEL.index(n); s(f's_memrealtime s[{70+2*n}:{71+2*n}]')
def prologue(s):
    s('''s_cmp_ge_u32 s2, 256
    s_cbranch_scc1 Lend''')
    stamp(s, 0)
    s('''s_load_dwordx16 s[4:19], s[0:1], 0
    s_load_dwordx2 s[32:33], s[0:1], 112
    s_load_dwordx8 s[20:27], s[0:1], 64
    s_load_dwordx4 s[28:31], s[0:1], 96
    s_getpc_b64 s[42:43]
    v_lshlrev_b32 v11, 7, v0
    v_min_u32 v11, CODESZ, v11
    global_load_dword v255, v11, s[42:43]
    v_lshrrev_b32 v11, 6, v0
    v_and_b32 v1, 63, v0
    v_readfirstlane_b32 s35, v11
    s_sub_u32 s36, s2, 32
    s_and_b32 s42, s36, 7
    s_lshr_b32 s43, s36, 3
    s_mul_i32 s37, s42, 28
    s_add_u32 s37, s37, s43
    s_lshl_b32 s38, s42, 2
    s_and_b32 s42, s43, 3
    s_add_u32 s38, s38, s42
    s_lshr_b32 s39, s43, 2
    s_mul_i32 s3, s2, 7168
    v_and_b32 v11, 3, v0
    v_lshrrev_b32 v12, 2, v0
    v_mul_u32_u24 v11, 1792, v11
    v_lshl_add_u32 v12, v12, 3, v11
    v_lshlrev_b32 v13, 4, v0''')
    s('s_load_dword s34, s[32:33], 0')
    base(s, 44, 4, 's3')
def xt_issue(s):
    s('''global_load_dwordx2 v[14:15], v12, s[44:45]
    global_load_dwordx2 v[16:17], v12, s[44:45] offset:896''')
def mktag(s): s('s_xor_b32 s34, s34, 0x5bd1e995')
def xt_finish(s):
    s('s_lshl_b32 s42, s3, 1'); s(f's_add_u32 s42, s42, {XT+3584}'); base(s, 46, 32, 's42')
    s('''v_mov_b32 v21, s34
    v_mov_b32 v23, s34
    v_mov_b32 v25, s34
    v_mov_b32 v27, s34
    v_mov_b32 v20, v14
    v_mov_b32 v24, v15
    v_mov_b32 v22, v16
    v_mov_b32 v26, v17
    global_store_dwordx4 v13, v[20:23], s[46:47] offset:-3584 sc1
    global_store_dwordx4 v13, v[24:27], s[46:47] offset:3584 sc1''')
def st_issue(s):
    s('''v_lshrrev_b32 v11, 3, v1
    v_and_b32 v12, 7, v1
    v_mul_u32_u24 v11, 896, v11
    v_lshl_add_u32 v12, v12, 4, v11''')
    for i in range(7): s(f'global_load_dwordx4 {V(64+4*i,4)}, v12, s[44:45] offset:{128*i}')
def st_prefill(s):
    s(f's_add_u32 s42, s3, {HT+3072}'); base(s, 46, 32, 's42')
    s('''v_lshlrev_b32 v13, 4, v1
    v_mov_b32 v20, -1
    v_mov_b32 v21, -1
    v_mov_b32 v22, -1
    v_mov_b32 v23, -1''')
    for i in range(7): s(f'global_store_dwordx4 v13, v[20:23], s[46:47] offset:{1024*i-3072} sc1')
def bf16r(s, d, a):
    s(f'v_cvt_pk_bf16_f32 {d}, {a}, {a}'); s(f'v_and_b32 {d}, 0xffff0000, {d}')
def st_finish(s):
    s('''v_mov_b32 v14, 0x3f803f80
    v_mov_b32 v16, 0
    v_mov_b32 v17, 0
    v_mov_b32 v18, 0
    v_mov_b32 v19, 0''')
    for i in range(28):
        s(f'v_dot2c_f32_bf16 v{16+(i&1)}, v{64+i}, v14'); s(f'v_dot2c_f32_bf16 v{18+(i&1)}, v{64+i}, v{64+i}')
    s('''v_add_f32 v16, v16, v17
    v_add_f32 v18, v18, v19''')
    for d in ('quad_perm:[1,0,3,2]', 'quad_perm:[2,3,0,1]', 'row_half_mirror'):
        s(f'v_add_f32_dpp v16, v16, v16 {d} row_mask:0xf bank_mask:0xf')
        s(f'v_add_f32_dpp v18, v18, v18 {d} row_mask:0xf bank_mask:0xf')
    s(f'''v_mul_f32 v16, {fb(1/448)}, v16
    v_mul_f32 v18, {fb(1/448)}, v18
    v_fma_f32 v18, -v16, v16, v18
    v_max_f32 v18, 0, v18''')
    bf16r(s, 'v18', 'v18'); s(f'v_add_f32 v18, {fb(1e-5)}, v18'); bf16r(s, 'v18', 'v18')
    s('''v_sqrt_f32 v18, v18
    v_mov_b32 v15, s34
    v_cvt_pk_bf16_f32 v14, v16, v18
    v_and_b32 v11, 7, v1
    v_cmp_eq_u32 vcc, 0, v11
    s_lshl_b32 s42, s2, 6''')
    s(f's_add_u32 s42, s42, {STATS}'); base(s, 46, 32, 's42')
    s.wait(vm=0)
    s('''s_and_saveexec_b64 s[48:49], vcc
    global_store_dwordx2 v1, v[14:15], s[46:47] sc1
    s_mov_b64 exec, s[48:49]''')
def tr_addr(s, d, t):
    s(f'''v_lshrrev_b32 {d}, 5, v1
    v_bfe_u32 {t}, v1, 2, 2
    v_lshl_add_u32 {d}, {d}, 3, {t}
    v_bfe_u32 {t}, v1, 4, 1
    v_lshlrev_b32 {d}, 6, {d}
    v_lshl_add_u32 {d}, {t}, 5, {d}
    v_and_b32 {t}, 3, v1
    v_lshl_add_u32 {d}, {t}, 3, {d}''')
def w1_issue(s):
    s('''s_lshr_b32 s50, s37, 3
    s_lshl_b32 s50, s50, 1
    s_and_b32 s42, s37, 1
    s_add_u32 s50, s50, s42
    s_bfe_u32 s51, s37, 0x20001
    s_mul_i32 s42, s51, 401408
    s_lshl_b32 s43, s50, 6
    s_add_u32 s42, s42, s43''')
    base(s, 52, 20, 's42')
    s('''v_lshrrev_b32 v11, 2, v1
    v_and_b32 v18, 3, v1
    v_mul_u32_u24 v11, 3584, v11
    v_lshl_add_u32 v18, v18, 4, v11''')
    for i in range(7):
        s(f'global_load_dwordx4 {V(64+4*i,4)}, v18, s[52:53]')
        if i < 6: s('v_add_u32 v18, 57344, v18')
def w1_unit(s):
    s('v_lshlrev_b32 v18, 4, v1'); s(f'v_add_u32 v19, {RB}, v18')
    tr_addr(s, 'v33', 'v11'); s(f'v_add_u32 v33, {RB}, v33')
    s('''s_mul_i32 s42, s50, 28
    s_mul_i32 s43, s51, 7
    s_add_u32 s42, s42, s43
    s_lshl_b32 s42, s42, 10''')
    s(f's_add_u32 s42, s42, {W1S+3072}'); base(s, 52, 32, 's42')
    for i in range(7): s(f'ds_write_b128 v19, {V(64+4*i,4)} offset:{1024*i}')
    for i in range(7):
        s(f'ds_read_b64_tr_b16 {V(96+4*i,2)}, v33 offset:{1024*i}'); s(f'ds_read_b64_tr_b16 {V(98+4*i,2)}, v33 offset:{1024*i+256}')
    for i in range(7): s(f'global_store_dwordx4 v18, {V(96+4*i,4)}, s[52:53] offset:{1024*i-3072} sc1')
def w1_flag(s):
    s('''s_lshl_b32 s42, s50, 2
    s_add_u32 s42, s42, s51
    s_lshl_b32 s42, s42, 7''')
    s(f's_add_u32 s42, s42, {W1F}'); base(s, 52, 32, 's42')
    s('''v_mov_b32 v18, 0
    v_mov_b32 v19, s34''')
    s.wait(vm=0)
    s('''s_mov_b64 exec, 1
    global_store_dword v18, v19, s[52:53] sc1
    s_mov_b64 exec, -1''')
def par_issue(s, isB):
    s('''s_lshl_b32 s42, s37, 2
    s_load_dword s40, s[14:15], s42
    s_load_dword s41, s[16:17], s42
    s_lshl_b32 s42, s37, 10
    v_and_b32 v28, 255, v0
    v_lshl_add_u32 v28, v28, 2, s42
    global_load_dword v29, v28, s[6:7]
    global_load_dword v30, v28, s[8:9]''')
    if isB: s('''global_load_dword v31, v28, s[10:11]
    global_load_dword v32, v28, s[12:13]''')
def exp_addr(s):
    s(f'''v_and_b32 v11, 255, v0
    v_lshlrev_b32 v11, 3, v11
    v_sub_u32 v11, 2047, v11
    v_cvt_f32_u32 v11, v11
    s_lshr_b32 s42, s35, 2
    s_mul_i32 s42, s42, {2*GS}''')
    for e in range(9): s(f'v_add_f32 v{34+e}, {fb(-e)}, v11')
    s('v_max_f32 v42, 0, v42')
    for e in range(0, 9, 2): s(f'v_cvt_pk_bf16_f32 v{34+e}, v{34+e}, v{34+min(e+1,8)}')
    for e in range(0, 9, 2):
        if e < 8: s(f'v_and_b32 v{35+e}, 0xffff0000, v{34+e}')
        s(f'v_lshlrev_b32 v{34+e}, 16, v{34+e}')
    for e in range(9): s(f'v_cvt_u32_f32 v{34+e}, v{34+e}')
    for e in range(9):
        p = f'v{34+e}'; d = f'v{2+e}'
        s(f'''v_lshrrev_b32 {d}, 8, {p}
        v_and_b32 v11, 7, {p}
        v_lshl_add_u32 {d}, {d}, 3, v11
        v_bfe_u32 v11, {p}, 3, 5
        v_lshl_add_u32 {d}, {d}, 5, v11
        v_lshl_add_u32 {d}, {d}, 2, s42''')
def kg_setup(s, isB):
    lo = LOG2E - struct.unpack('<f', struct.pack('<f', LOG2E))[0]
    s(f'''s_and_b32 s42, s35, 2
    s_lshl_b32 s42, s42, 3
    s_lshr_b32 s43, s40, s42
    s_lshl_b32 s43, s43, 16
    s_mov_b32 s48, {fb(LOG2E)}
    v_mov_b32 v39, s43
    v_mul_f32 v38, s48, v39
    v_fma_f32 v40, s48, v39, -v38
    v_fmac_f32 v40, {fb(lo)}, v39
    v_exp_f32 v38, v38
    v_mul_f32 v40, {fb(math.log(2))}, v40
    v_fmac_f32 v38, v38, v40''')
    bf16r(s, 'v38', 'v38')
    s(f'''s_and_b32 s42, s35, 3
    s_mul_i32 s42, s42, {GS}
    s_add_u32 s54, s42, {HI if isB else 0}
    v_lshl_add_u32 v33, v1, 3, s54
    v_lshlrev_b32 v34, 16, v29
    v_and_b32 v35, 0xffff0000, v29
    v_mul_f32 v34, s48, v34
    v_mul_f32 v35, s48, v35
    v_exp_f32 v34, v34
    v_exp_f32 v35, v35
    v_lshlrev_b32 v36, 16, v30
    v_and_b32 v37, 0xffff0000, v30
    v_cvt_pk_bf16_f32 v35, v34, v35
    v_mul_f32 v36, v38, v36
    v_mul_f32 v37, v38, v37
    v_lshlrev_b32 v34, 16, v35
    v_and_b32 v35, 0xffff0000, v35
    v_mul_f32 v34, v38, v34
    v_mul_f32 v35, v38, v35
    v_mul_f32 v36, {fb((-1 if isB else 1)/(2*math.pi))}, v36
    v_mul_f32 v37, {fb((-1 if isB else 1)/(2*math.pi))}, v37
    v_mul_f32 v34, {fb(-LOG2E)}, v34
    v_mul_f32 v35, {fb(-LOG2E)}, v35''')
def cpow(s, d, p):
    s(f'''v_mul_f32 v60, {fb(p)}, v34
    v_mul_f32 v61, {fb(p)}, v35
    v_mul_f32 v62, {fb(p)}, v36
    v_mul_f32 v63, {fb(p)}, v37
    v_exp_f32 v60, v60
    v_exp_f32 v61, v61
    v_fract_f32 v62, v62
    v_fract_f32 v63, v63
    v_cos_f32 v{d}, v62
    v_cos_f32 v{d+1}, v63
    v_sin_f32 v{d+2}, v62
    v_sin_f32 v{d+3}, v63
    v_pk_mul_f32 {V(d,2)}, {V(d,2)}, v[60:61]
    v_pk_mul_f32 {V(d+2,2)}, {V(d+2,2)}, v[60:61]''')
def cmul(d, a, m, t):
    return [f'v_pk_mul_f32 {V(t,2)}, {V(a,2)}, {V(m,2)}', f'v_pk_mul_f32 {V(t+2,2)}, {V(a,2)}, {V(m+2,2)}',
            f'v_pk_fma_f32 {V(d,2)}, {V(a+2,2)}, {V(m+2,2)}, {V(t,2)} neg_lo:[1,0,0] neg_hi:[1,0,0]',
            f'v_pk_fma_f32 {V(d+2,2)}, {V(a+2,2)}, {V(m,2)}, {V(t+2,2)}']
cw = [0, 0]
def crow(a, row, k=0):
    c = 128 + 6 * k + 2 * (cw[k] % 3); cw[k] += 1
    return [f'v_cvt_pk_bf16_f32 v{c}, v{a}, v{a+1}', f'v_cvt_pk_bf16_f32 v{c+1}, v{a+2}, v{a+3}', f'ds_write_b64 v33, {V(c,2)} offset:{row*ROW}']
def zipl(a, b):
    o = []
    for i in range(max(len(a), len(b))): o += a[i:i+1] + b[i:i+1]
    return o
def kg_lo(s):
    cpow(s, 40, 8); cpow(s, 48, 128)
    s('''v_mov_b32 v128, 0x3f803f80
    v_mov_b32 v129, 0
    ds_write_b64 v33, v[128:129]'''); cw[0] = 1
    a = crow(40, 1) + cmul(44, 40, 40, 52) + crow(44, 2); b = crow(48, 16, 1)
    for j in range(3, 16): a += cmul(44, 44, 40, 52) + crow(44, j)
    for j in range(17, 32): b += cmul(48, 48, 40, 56) + crow(48, j, 1)
    o = zipl(a, b); s(o)
HROW = {256:8, 258:9, 512:10, 768:11, 260:12, 262:13, 516:14, 772:15, 1024:16, 1280:17, 1536:18, 1792:19, 2048:24}
def kg_hi(s):
    cpow(s, 40, 1); cpow(s, 44, 256)
    s('''v_add_f32 v38, v38, v38
    v_lshlrev_b32 v48, 16, v31
    v_and_b32 v49, 0xffff0000, v31
    v_lshlrev_b32 v50, 16, v32
    v_and_b32 v51, 0xffff0000, v32
    v_mul_f32 v48, v38, v48
    v_mul_f32 v49, v38, v49
    v_mul_f32 v50, -v38, v50
    v_mul_f32 v51, -v38, v51''')
    s(cmul(52, 48, 44, 60))
    a = crow(48, 0); b = crow(52, 8, 1)
    for p in range(1, 8):
        a += cmul(48, 48, 40, 56) + crow(48, p)
        if p in (2, 6): a += cmul(92, 48, 44, 56) + crow(92, HROW[256+p])
        if p == 4: a += cmul(140, 48, 44, 56) + crow(140, 12)
    for p in range(512, 2049, 256): b += cmul(52, 52, 44, 60) + crow(52, HROW[p], 1)
    b += cmul(140, 140, 44, 60) + crow(140, 14, 1) + cmul(140, 140, 44, 60) + crow(140, 15, 1)
    s(zipl(a, b))
def kg_mfma(s):
    s(f'''v_and_b32 v11, 31, v1
    v_lshrrev_b32 v12, 5, v1
    v_mul_u32_u24 v13, {ROW}, v11
    v_lshl_add_u32 v13, v12, 4, v13
    v_add_u32 v13, s54, v13
    v_lshlrev_b32 v12, 9, v12
    v_lshl_add_u32 v12, v11, 2, v12
    v_add_u32 v12, s54, v12''')
def kg_mfma2(s):
    rd = lambda k: [f'ds_read_b128 {V(80+8*(k%6),4)}, v13 offset:{HI+32*k}', f'ds_read_b128 {V(84+8*(k%6),4)}, v13 offset:{32*k}']
    for k in range(5): s(rd(k))
    for k in range(16):
        if k + 5 < 16: s(rd(k + 5))
        s(f'v_mfma_f32_32x32x16_bf16 v[64:79], {V(80+8*(k%6),4)}, {V(84+8*(k%6),4)}, {"0" if k==0 else "v[64:79]"}')
    for r, p in enumerate([0,1,2,3,256,258,512,768,1024,1280,1536,1792,2048]):
        s(f'ds_write_b32 v12, v{64+r} offset:{((p>>8)*8+(p&7))*128}')
def expand(s):
    for e in range(9): s(f'ds_read2st64_b32 {V(12+2*e,2)}, v{2+e} offset0:0 offset1:{GS//256}')
    s(f'''v_and_b32 v11, 255, v0
    s_lshr_b32 s42, s35, 2
    s_mul_i32 s42, s42, {RCH}
    s_add_u32 s42, s42, {RB}
    v_cmp_ne_u32 vcc, 255, v11
    v_lshl_add_u32 v11, v11, 4, s42''')
    for e in range(9): s(f'v_add_f32 v{12+2*e}, v{12+2*e}, v{13+2*e}')
    s('v_cndmask_b32 v28, 0, v28, vcc')
    for i in range(4): s(f'v_cvt_pk_bf16_f32 v{4+i}, v{12+4*i}, v{14+4*i}')
    s('ds_write_b128 v11, v[4:7]')
    for i in range(4): s(f'v_cvt_pk_bf16_f32 v{32+i}, v{14+4*i}, v{16+4*i}')
    s(f'ds_write_b128 v11, v[32:35] offset:{RCP}')
def zero_pads(s):
    s(f'''s_mul_i32 s42, s35, {RCP}
    s_add_u32 s42, s42, {RB+4096}
    v_and_b32 v11, 7, v1
    v_lshl_add_u32 v11, v11, 2, s42
    v_mov_b32 v14, 0
    v_mov_b32 v15, 0
    ds_write_b32 v11, v14
    s_and_b32 s42, s35, 1
    s_mul_i32 s42, s42, {UCH}
    s_add_u32 s42, s42, {UB}
    v_min_u32 v11, 59, v1
    v_lshl_add_u32 v11, v11, 3, s42
    ds_write_b64 v11, v[14:15]''')
def spin_begin(s, l):
    s(f's_mov_b32 s55, {SPIN}'); s.label(l)
def spin_end(s, l):
    s(f'''s_cbranch_vccz {l}x
    s_sub_u32 s55, s55, 1
    s_cmp_lg_u32 s55, 0
    s_cbranch_scc1 {l}'''); s.label(l + 'x')
def ug_addr(s):
    s(f'''v_and_b32 v36, 255, v0
    v_lshrrev_b32 v37, 2, v36
    v_and_b32 v38, 3, v36
    v_mul_u32_u24 v37, 14336, v37
    v_lshl_add_u32 v37, v38, 4, v37
    v_lshlrev_b32 v38, 4, v36
    s_and_b32 s42, s37, 1
    s_mul_i32 s42, s42, 7168
    s_lshr_b32 s43, s37, 1
    s_lshl_b32 s43, s43, 6
    s_add_u32 s42, s42, s43
    s_add_u32 s42, s42, {XT}''')
    base(s, 56, 32, 's42')
    for i in range(1, 4): base(s, 56 + 2*i, 54 + 2*i, 64*14336)
    base(s, 64, 32, STATS + 4096); base(s, 66, 32, STATS + 12288)
def ug_issue(s):
    for i in range(4):
        s(f'global_load_dwordx4 {V(64+4*i,4)}, v38, s[{64+2*(i>>1)}:{65+2*(i>>1)}] offset:{-4096 if i%2==0 else 0} sc1')
        s(f'global_load_dwordx4 {V(80+4*i,4)}, v37, s[{56+2*i}:{57+2*i}] sc1')
def ug_check(s):
    s('v_min_u32 v39, v65, v67'); s('v_max_u32 v40, v65, v67')
    for i in [4,1,5,2,6,3,7]:
        s(f'v_min3_u32 v39, v39, v{65+4*i}, v{67+4*i}'); s(f'v_max3_u32 v40, v40, v{65+4*i}, v{67+4*i}')
    s('''v_xor_b32 v39, s34, v39
    v_xor_b32 v40, s34, v40
    v_or_b32 v39, v39, v40
    v_cmp_ne_u32 vcc, 0, v39''')
def ubuild(s):
    s(f'v_lshlrev_b32 v36, 2, v36'); s(f'v_add_u32 v39, {UB+480}, v36')
    for t in range(8):
        ms = 64 + 2*t; x = 80 + 2*t
        s(f'''v_and_b32 v{ms+1}, 0xffff0000, v{ms}
        v_lshlrev_b32 v{ms}, 16, v{ms}
        v_rcp_f32 v{ms+1}, v{ms+1}
        v_lshlrev_b32 v{96+2*t}, 16, v{x}
        v_and_b32 v{97+2*t}, 0xffff0000, v{x}
        v_pk_add_f32 {V(112+2*t,2)}, {V(96+2*t,2)}, {V(ms,2)} op_sel_hi:[1,0] neg_lo:[0,1] neg_hi:[0,1]
        v_pk_mul_f32 {V(112+2*t,2)}, {V(112+2*t,2)}, {V(ms,2)} op_sel:[0,1]''')
        if t & 1:
            i = t >> 1
            s(f'''v_cvt_pk_bf16_f32 v{48+2*i}, v{110+2*t}, v{112+2*t}
            v_cvt_pk_bf16_f32 v{49+2*i}, v{111+2*t}, v{113+2*t}
            ds_write_b32 v39, v{48+2*i} offset:{1024*i}
            ds_write_b32 v39, v{49+2*i} offset:{1024*i+UCH}''')
def vbuild(s):
    s(f'''s_lshl_b32 s42, s41, 16
    s_and_b32 s43, s41, 0xffff0000
    v_and_b32 v36, 255, v0
    v_lshrrev_b32 v37, 7, v36
    v_mul_u32_u24 v37, 1280, v37
    v_bfe_u32 v38, v36, 1, 2
    v_mul_u32_u24 v38, 320, v38
    v_add_u32 v37, v37, v38
    v_bfe_u32 v38, v36, 3, 4
    v_lshl_add_u32 v37, v38, 4, v37
    v_and_b32 v38, 1, v36
    v_lshl_add_u32 v37, v38, 3, v37''')
    for i in range(4):
        for ch in range(2):
            d = 64 + 4*i + 2*ch
            s(f'''v_fma_f32 v{d}, v{112+4*i+ch}, s{42+ch}, v{96+4*i+ch}
            v_fma_f32 v{d+1}, v{114+4*i+ch}, s{42+ch}, v{98+4*i+ch}
            ds_write_b64 v37, {V(d,2)} offset:{VB+10240*ch+2560*i}''')
def conv_addr(s):
    s(f'''v_and_b32 v11, 15, v1
    v_lshrrev_b32 v12, 4, v1
    s_lshr_b32 s42, s35, 1
    s_and_b32 s43, s35, 1
    s_mul_i32 s48, s42, {RCH}
    s_lshl_b32 s49, s43, 8
    s_sub_u32 s48, s48, s49
    s_add_u32 s48, s48, {RB + 2*(2031 - 32*(8+3)) }
    v_lshlrev_b32 v13, 3, v12
    v_sub_u32 v13, v13, v11
    v_and_b32 v14, 1, v11
    v_mul_u32_u24 v14, {RCP-2}, v14
    v_lshl_add_u32 v13, v13, 1, s48
    v_add_u32 v13, {RCP-2}, v13
    v_sub_u32 v2, v13, v14
    v_subrev_u32 v3, 1024, v2
    v_subrev_u32 v4, 2048, v2
    v_subrev_u32 v5, 3072, v2
    s_mul_i32 s48, s42, {UCH}
    s_sub_u32 s48, s48, s49
    s_add_u32 s48, s48, {UB + 448 - 192}
    v_lshlrev_b32 v6, 5, v11
    v_lshl_add_u32 v6, v12, 4, v6
    v_add_u32 v6, s48, v6
    s_mul_i32 s48, s35, 10240
    v_mul_u32_u24 v7, 320, v12
    v_lshl_add_u32 v7, v11, 4, v7
    v_add_u32 v7, s48, v7''')
def conv(s, fill):
    NA, NB = 5, 10
    mf = [(r, sg, mu) for r in range(4) for sg in range(8) for mu in range(8 - sg)]
    last = {}
    for n, (r, sg, mu) in enumerate(mf): last[('A', r, sg)] = n; last[('B', r, mu)] = n
    order = []
    for (r, sg, mu) in mf:
        for k in (('A', r, sg), ('B', r, mu)):
            if k not in order: order.append(k)
    qa = [k for k in order if k[0] == 'A']; qb = [k for k in order if k[0] == 'B']
    fa = [16 + 4*i for i in range(NA)]; fbb = [96 + 4*i for i in range(NB)]; slot = {}
    def ld(k):
        if k[0] == 'A':
            d = slot[k] = fa.pop(0); o = 128*(1 - (k[2] & 1)) + 16*(3 - k[1]); a = 2 + (k[2] >> 1)
            return [f'ds_read2_b32 {V(d,2)}, v{a} offset0:{o} offset1:{o+1}', f'ds_read2_b32 {V(d+2,2)}, v{a} offset0:{o+2} offset1:{o+3}']
        d = slot[k] = fbb.pop(0)
        return [f'ds_read_b128 {V(d,4)}, v6 offset:{512*k[2] + 64*(3-k[1])}']
    s(ld(qa.pop(0)))
    for i in range(8): s(ld(qb.pop(0)))
    items = []; seen = set()
    for n, (r, sg, mu) in enumerate(mf):
        R = sg + mu; acc = V(64 + 4*R, 4)
        it = [f'v_mfma_f32_16x16x32_bf16 {acc}, {V(slot[("A",r,sg)],4)}, {V(slot[("B",r,mu)],4)}, {acc if R in seen else 0}']
        seen.add(R)
        if last[('A', r, sg)] == n: fa.append(slot[('A', r, sg)])
        if last[('B', r, mu)] == n: fbb.append(slot[('B', r, mu)])
        if qa and fa: it += ld(qa.pop(0))
        if qb and fbb: it += ld(qb.pop(0))
        items.append(it)
    s(weave(items, fill, 2, 114))
    for R in range(8): s(f'ds_write_b128 v7, {V(64+4*R,4)} offset:{YB+1280*R}')
def epilogue(s):
    s(f'''v_and_b32 v11, 255, v0
    v_lshrrev_b32 v12, 5, v11
    v_mul_u32_u24 v12, 1280, v12
    v_and_b32 v13, 1, v11
    v_mul_u32_u24 v13, 640, v13
    v_add_u32 v12, v12, v13
    v_bfe_u32 v13, v11, 1, 4
    v_lshl_add_u32 v12, v13, 4, v12
    s_lshr_b32 s42, s35, 2
    s_mul_i32 s43, s42, 10240
    v_add_u32 v13, s43, v12
    v_add_u32 v12, s43, v13
    v_lshlrev_b32 v11, 4, v0
    s_lshl_b32 s42, s37, 13
    s_add_u32 s42, s42, {HT}''')
    base(s, 46, 32, 's42')
def epilogue2(s):
    for h in range(2):
        s(f'''ds_read_b128 {V(16+4*h,4)}, v13 offset:{VB+320*h}
        ds_read_b128 {V(24+4*h,4)}, v12 offset:{YB+320*h}
        ds_read_b128 {V(32+4*h,4)}, v12 offset:{YB+10240+320*h}''')
    for i in range(4):
        s(f'''v_pk_add_f32 {V(24+2*i,2)}, {V(24+2*i,2)}, {V(32+2*i,2)}
        v_pk_add_f32 {V(16+2*i,2)}, {V(16+2*i,2)}, {V(24+2*i,2)}
        v_cvt_pk_bf16_f32 v{40+i}, v{16+2*i}, v{17+2*i}
        v_min_u32 v{40+i}, -2, v{40+i}''')
    s('global_store_dwordx4 v11, v[40:43], s[46:47] sc1')
```

```python
import sys
from gen2 import *
NAME = 'sequential_preLN__ssm_conv_s4d__mixer_channel_mlp__prompt'
DBGW = None; ENC = None; NE = 0
def dump_stamps(s):
    if not gen1.STAMP: return
    stamp(s, 15)
    s('s_memtime s[48:49]'); s('s_sub_u32 s48, s48, s18')
    if DBGW is not None:
        def dd(s):
            for i in range(1, 16): s(f's_sub_u32 s42, s{70+2*i}, s70'); s(f'v_mov_b32 v{15+i}, s42')
            s('v_mov_b32 v31, s48'); s('v_mov_b32 v2, 0'); s('s_mov_b64 exec, 1')
            for i in range(4): s(f'global_store_dwordx4 v2, {V(16+4*i,4)}, s[30:31] offset:{16*i}')
            s('s_mov_b64 exec, -1')
            if ENC is not None:
                global NE; NE += 1
                s(f's_sub_u32 s42, s{70+2*ENC}, s70'); s('s_add_u32 s42, s42, 5000'); s.label(f'Lenc{NE}')
                s(f'''s_memrealtime s[44:45]
                s_sub_u32 s44, s44, s70
                s_cmp_lt_u32 s44, s42
                s_cbranch_scc1 Lenc{NE}''')
        s(f'''s_lshl_b32 s42, s2, 3
        s_add_u32 s42, s42, s35
        s_cmp_eq_u32 s42, {DBGW}'''); s.cond('s_cbranch_scc0', dd)
    s('''s_lshl_b32 s42, s2, 3
    s_add_u32 s42, s42, s35
    s_lshl_b32 s42, s42, 6''')
    s(f's_add_u32 s42, s42, {DBG}'); base(s, 46, 32, 's42'); s('v_mov_b32 v2, 0')
    for i in range(16): s(f'v_mov_b32 v{16+i}, s{70+2*i}')
    s('s_mov_b64 exec, 1')
    for i in range(4): s(f'global_store_dwordx4 v2, {V(16+4*i,4)}, s[46:47] offset:{16*i}')
def tail(s, isB):
    X = 'B' if isB else 'A'
    s.barrier(); stamp(s, 5)
    epilogue2(s); hg_addr(s); flag_addr(s, 52, W2F, J); colsum(s)
    s.wait(vm=0); stamp(s, 6)
    hgather(s, 'Lhg' + X); stamp(s, 7)
    if not isB:
        def ep(s):
            s('''s_xor_b32 s42, s34, 0x5bd1e995
            s_add_u32 s42, s42, 1
            v_mov_b32 v12, 0
            v_mov_b32 v13, s42
            s_mov_b64 exec, 1
            global_store_dword v12, v13, s[32:33] sc1
            s_mov_b64 exec, -1''')
        s('''s_or_b32 s42, s36, s35
        s_cmp_eq_u32 s42, 0'''); s.cond('s_cbranch_scc0', ep)
    mlp(s, isB); dump_stamps(s); s('s_endpgm')
def build():
    p = S(); prologue(p)
    if gen1.STAMP: p('s_memtime s[18:19]')
    p('''s_cmp_lt_u32 s2, 32
    s_cbranch_scc1 Lhelper
    s_cmp_ge_u32 s35, 4
    s_cbranch_scc1 LB''')
    a = p.fork(); b = p.fork(); h = p.fork()
    s = a
    stamp(s, 20); xt_issue(s); par_issue(s, False); stamp(s, 21); exp_addr(s); stamp(s, 22); mktag(s); xt_finish(s); stamp(s, 23); stamp(s, 1)
    kg_setup(s, False); stamp(s, 24); kg_lo(s); stamp(s, 25); kg_mfma(s); stamp(s, 26); s.barrier(); stamp(s, 2)
    kg_mfma2(s); zero_pads(s); w1_addr(s); s.barrier(); stamp(s, 3)
    expand(s); stamp(s, 27); conv_addr(s); flag_wait(s, 52, 'Lw1A'); stamp(s, 28); s.barrier(); stamp(s, 4)
    conv(s, w1_loads()); epilogue(s); stamp(s, 29); stamp(s, 30); tail(s, False)
    s = b; s.label('LB')
    def on(w, f, ne=False): s(f's_cmp_eq_u32 s35, {w}'); s.cond('s_cbranch_scc1' if ne else 's_cbranch_scc0', f)
    stamp(s, 20); on(7, st_issue); on(7, xt_issue, True); par_issue(s, True); on(6, w1_issue); on(7, st_prefill)
    stamp(s, 21); exp_addr(s); stamp(s, 22); mktag(s); on(7, xt_finish, True); on(7, st_finish); stamp(s, 23); on(6, w1_unit); stamp(s, 1)
    kg_setup(s, True); stamp(s, 24); kg_hi(s); stamp(s, 25); on(6, w1_flag); ug_addr(s); stamp(s, 26); s.barrier(); stamp(s, 2)
    ug_issue(s); w1_addr(s); s.barrier(); stamp(s, 3)
    expand(s); stamp(s, 27); ug_check(s)
    def retry(s):
        spin_begin(s, 'Lug'); ug_issue(s); ug_check(s); spin_end(s, 'Lug')
    s.cond('s_cbranch_vccz', retry)
    stamp(s, 28); ubuild(s); s.barrier(); stamp(s, 4)
    prefill(s); flag_wait(s, 52, 'Lw1B'); s(w1_loads()); vbuild(s); epilogue(s); stamp(s, 29); s.wait(vm=28); stamp(s, 30)
    tail(s, True)
    h.label('Lhelper'); helper(h)
    ref = open(f'cdna_kernels/{NAME}.s.ref').read().split('\n')
    hdr = [l for l in ref if l.startswith(';') and '@launch' not in l]
    o = hdr + [f'; @launch grid=(256,1,1) block=(512,1,1) lds={LDS}', '.amdgcn_target "amdgcn-amd-amdhsa--gfx950"', '.text',
        f'.globl {NAME}_kernel', '.p2align 8', f'.type {NAME}_kernel,@function', f'{NAME}_kernel:']
    o += p.out + a.out + b.out + h.out + ['Lend:', '  s_endpgm', f'.set CODESZ, Lend-{NAME}_kernel-64']
    o += ref[ref.index('.section .rodata,"a"'):]
    print('nops', a.nn, b.nn, h.nn, 'lines', len(a.out), len(b.out), len(h.out), file=sys.stderr)
    return '\n'.join(o)
if __name__ == '__main__':
    gen1.STAMP = 'stamp' in sys.argv
    for a in sys.argv:
        if a.startswith('dbg='): DBGW = int(a[4:])
        if a.startswith('enc='): ENC = int(a[4:])
        if a.startswith('sel='): gen1.SEL[:] = [int(x) for x in a[4:].split(',')]
    open(sys.argv[1], 'w').write(build())
```

```python
import re, copy
RX = re.compile(r'\b([vs])(\d+)\b|\b([vs])\[(\d+):(\d+)\]|\b(vcc|exec|m0)\b')
def regs(op):
    out = []
    for m in RX.finditer(op):
        if m.group(1): out.append(m.group(1) + m.group(2))
        elif m.group(3): out += [m.group(3) + str(i) for i in range(int(m.group(4)), int(m.group(5)) + 1)]
        else: out.append(m.group(6))
    return out
TRANS = ('v_exp_', 'v_log_', 'v_rcp_', 'v_rsq_', 'v_sqrt_', 'v_sin_', 'v_cos_')
class Ins:
    def __init__(s, t):
        s.t = t; p = t.split(None, 1); s.m = m = p[0]
        ops = [o.strip() for o in p[1].split(',')] if len(p) > 1 else []
        j = [];
        for o in ops:
            if j and j[-1].count('[') > j[-1].count(']'): j[-1] += ',' + o
            else: j.append(o)
        ops = j
        s.k = 'o'; s.w = []; s.r = []; s.c = []; s.ab = []; s.data = []; s.passes = 0
        R = lambda l: [x for o in l for x in regs(o)]
        if m.startswith('v_mfma'):
            s.k = 'mfma'; s.w = regs(ops[0]); s.ab = R(ops[1:3]); s.c = regs(ops[3]); s.r = s.ab + s.c
            s.passes = 8 if '32x32' in m else 4
        elif m.startswith('v_'):
            s.k = 'valu'; s.w = regs(ops[0]); s.r = R(ops[1:])
            if 'swap' in m: s.w = R(ops[:2]); s.r = list(s.w)
            if m.startswith(('v_dot2c', 'v_fmac', 'v_pk_fmac')): s.c = list(s.w); s.r += s.w
            if m.startswith('v_dot2_'): s.c = regs(ops[3])
            if 'dpp' in m: s.r += s.w
            if m.startswith('v_cndmask') and len(ops) < 4: s.r.append('vcc')
        elif m.startswith('ds_read'):
            s.k = 'dsr'; s.w = regs(ops[0]); s.r = R(ops[1:])
        elif m.startswith('ds_'):
            s.k = 'dsw'; s.r = R(ops)
        elif m.startswith('global_load'):
            s.k = 'vml'; s.w = regs(ops[0]); s.r = R(ops[1:])
        elif m.startswith('global_store'):
            s.k = 'vms'; s.r = R(ops); s.data = regs(ops[1]) if ('x4' in m or 'x3' in m) else []
        elif m.startswith('s_load') or m.startswith('s_memtime') or m.startswith('s_memrealtime'):
            s.k = 'smem'; s.w = regs(ops[0]); s.r = R(ops[1:])
        elif m.startswith(('s_cmp', 's_bitcmp')):
            s.k = 'salu'; s.r = R(ops)
        elif m.startswith('s_cbranch_vcc'):
            s.k = 'br'; s.r = ['vcc']
        elif m.startswith(('s_cbranch', 's_branch', 's_endpgm')): s.k = 'br'
        elif m in ('s_waitcnt', 's_barrier', 's_nop', 's_setprio', 's_sleep'): s.k = 'o'
        elif m.startswith('s_'):
            s.k = 'salu'; s.w = regs(ops[0]); s.r = R(ops[1:])
            if 'saveexec' in m: s.w.append('exec')
        else: raise Exception('unknown ' + t)
        s.trans = m.startswith(TRANS); s.dot = m.startswith('v_dot')
        s.dpp = 'dpp' in m; s.perm = 'permlane' in m; s.rl = m.startswith(('v_readlane', 'v_readfirstlane'))
def need(p, c):
    n = 0; pw = set(p.w); cr = set(c.r); cw = set(c.w)
    mem = c.k in ('dsr', 'dsw', 'vml', 'vms')
    if p.k == 'mfma':
        if c.k == 'mfma':
            if pw & set(c.ab): n = p.passes + 4
            elif pw & set(c.c) and not (p.w == c.c and p.passes == c.passes): n = p.passes + 2
            elif pw & cw and not pw & set(c.c): n = p.passes + 2
        elif (c.k == 'valu' or mem) and pw & (cr | cw): n = p.passes + 4
        if c.k == 'valu' and set(p.c) & cw: n = max(n, p.passes - 1)
    elif p.k == 'valu':
        v = {x for x in pw if x[0] == 'v' and x != 'vcc'}; sg = pw - v
        if c.k == 'mfma' and v & cr: n = 2
        if c.k == 'valu':
            if v & cr:
                if p.trans: n = max(n, 1)
                if c.dpp or c.perm: n = max(n, 2)
                if c.rl: n = max(n, 1)
            if sg & cr: n = max(n, 2)
        if mem and sg & cr: n = max(n, 5)
        if mem and p.trans and v & cr: n = max(n, 1)
        if p.dot and v & (cr | cw):
            if not (c.m == p.m and set(c.c) == v and sum(x in v for x in c.r) == len(v)): n = max(n, 3)
    elif p.k == 'vms' and p.data and set(p.data) & cw: n = 2
    elif p.k == 'dsw' and ('b128' in p.m) and c.k == 'valu' and set(p.r) & cw: n = 1
    return n
NL = 0
class S:
    def __init__(s):
        s.out = []; s.hist = []; s.vm = []; s.lg = []; s.nn = 0; s.opt = set(); s.keep = []; s.okey = {}; s.done = {}
    def fork(s):
        n = S(); n.hist = list(s.hist); n.vm = list(s.vm); n.lg = list(s.lg); n.opt = set(s.opt); n.keep = list(s.keep); n.okey = dict(s.okey); n.done = {k: set(v) for k, v in s.done.items()}; return n
    def touch(s, r):
        use = set(regs(r)); vm = lg = None
        for n, p in enumerate(s.vm):
            if set(p.w) & use: vm = len(s.vm) - n - 1
        for n, p in enumerate(s.lg):
            if set(p.w) & use: lg = len(s.lg) - n - 1
        s.wait(vm, lg)
    def raw(s, t): s.out.append(t)
    def label(s, l): s.out.append(l + ':')
    def _emit(s, t, i, w=1):
        s.out.append('  ' + t); s.hist.append((i, w)); s.hist = s.hist[-48:]
    def wait(s, vm=None, lg=None):
        p = []
        if vm is not None and len(s.vm) > vm:
            s.vm = s.vm[len(s.vm) - vm:] if vm else []
            p.append(f'vmcnt({min(63, sum(id(x) not in s.opt for x in s.vm))})')
        if lg is not None and len(s.lg) > lg:
            if any(x.k == 'smem' for x in s.lg): lg = 0
            s.lg = s.lg[len(s.lg) - lg:] if lg else []
            p.append(f'lgkmcnt({min(15, sum(id(x) not in s.opt for x in s.lg))})')
        if p: s._emit('s_waitcnt ' + ' '.join(p), Ins('s_waitcnt 0'))
    def cond(s, br, body, key=None):
        global NL; NL += 1; l = f'Lc{NL}'
        s(f'{br} {l}'); vm0, lg0, h0 = list(s.vm), list(s.lg), list(s.hist)
        mine = [x for x in vm0 + lg0 if key and s.okey.get(id(x)) == key]
        for x in mine: s.opt.discard(id(x))
        if key:
            s.vm = [x for x in s.vm if s.okey.get(id(x)) != (key[0], not key[1])]
            s.lg = [x for x in s.lg if s.okey.get(id(x)) != (key[0], not key[1])]
        body(s); s.label(l)
        nv = [x for x in s.vm if x not in vm0]; nl = [x for x in s.lg if x not in lg0]
        for x in nv + nl: s.okey[id(x)] = key
        for x in nv + nl + mine: s.opt.add(id(x)); s.keep.append(x)
        def alive(x, q):
            if x in q or not key: return True
            k = s.okey.get(id(x))
            if k == key: return False
            if k == (key[0], not key[1]): return True
            d = s.done.setdefault(id(x), set()); d.add(key); s.keep.append(x)
            return (key[0], not key[1]) not in d
        s.vm = [x for x in vm0 if alive(x, s.vm)] + nv; s.lg = [x for x in lg0 if alive(x, s.lg)] + nl
        s.hist = h0 + [(p, 0) for p, w in s.hist if all(p is not q for q, _ in h0)]
    def __call__(s, t):
        if isinstance(t, (list, tuple)):
            for x in t: s(x)
            return
        if callable(t): return t(s)
        if '\n' in t:
            for x in t.split('\n'):
                x = x.split(';')[0].strip()
                if x: s(x)
            return
        i = Ins(t); use = set(i.r) | set(i.w); vm = lg = None
        for q, k in ((s.vm, 'vm'), (s.lg, 'lg')):
            for n, p in enumerate(q):
                if set(p.w) & use:
                    if k == 'vm': vm = len(q) - n - 1
                    else: lg = len(q) - n - 1
        s.wait(vm, lg)
        d = 0; n = 0
        for p, w in reversed(s.hist):
            n = max(n, need(p, i) - d); d += w
        if n > 0:
            s.nn += n
            while n > 0:
                k = min(n, 16); s._emit(f's_nop {k-1}', Ins('s_nop 0'), k); n -= k
        w = 1
        if i.m == 's_nop': w = int(t.split()[1]) + 1
        s._emit(t, i, w)
        if i.k in ('vml', 'vms'): s.vm.append(i)
        if i.k in ('dsr', 'dsw', 'smem'): s.lg.append(i)
    def barrier(s, keep=False):
        n = len(s.lg)
        if keep:
            n = 0
            for k, p in enumerate(s.lg):
                if p.k == 'dsw': n = k + 1
        if n: s.wait(lg=len(s.lg) - n)
        s('s_barrier')
def weave(main, fill, start=0, end=None):
    end = len(main) if end is None else end
    out = []; n = end - start; k = 0
    for i, m in enumerate(main):
        out.append(m)
        if start <= i < end:
            t = (len(fill) * (i - start + 1) + n - 1) // n
            out += fill[k:t]; k = t
    return out + fill[k:]
def L(t): return [x.split(';')[0].strip() for x in t.split('\n') if x.split(';')[0].strip()]
```

```python
from dsl import *
import struct, math
def fb(x): return hex(struct.unpack('<I', struct.pack('<f', x))[0])
def V(a, n): return f'v[{a}:{a+n-1}]'
W1F, F1, STATS, XT, W1S, W2S, HT, PART, DBG = 4096, 32768, 65536, 131072, 0x400000, 0x600000, 0x800000, 0xA00000, 0x2000000
F2 = F1 + 4096
GS, ROW, HI = 30208, 528, 16896
RB, RCH, RCP = 120832, 8320, 4160
UB, UCH = 137472, 4576
YB, VB = 0, 40960
HB, HH = 61440, 28736
GB, OB, SB = 0, 32768, 50176
LDS = 146688
SPIN = 20000
LOG2E = 1.4426950408889634
TAG = 's34'; W = 's35'; C = 's37'; TILE = 's38'; J = 's39'
def base(s, d, src, off):
    s(f's_add_u32 s{d}, s{src}, {off}'); s(f's_addc_u32 s{d+1}, s{src+1}, 0')
STAMP = False
CLK = 's_memrealtime'
SEL = list(range(16))
def stamp(s, n):
    if STAMP and n in SEL:
        n = SEL.index(n); s(f'{CLK} s[{70+2*n}:{71+2*n}]')
def prologue(s):
    s('''s_load_dwordx16 s[4:19], s[0:1], 0
    s_load_dwordx2 s[32:33], s[0:1], 112
    s_load_dwordx8 s[20:27], s[0:1], 64
    s_load_dwordx4 s[28:31], s[0:1], 96
    s_getpc_b64 s[68:69]
    s_cmp_ge_u32 s2, 256
    s_cbranch_scc1 Lend''')
    stamp(s, 0)
    s('''v_lshrrev_b32 v11, 6, v0
    v_and_b32 v1, 63, v0
    v_readfirstlane_b32 s35, v11
    s_sub_u32 s36, s2, 32
    s_cselect_b32 s42, 0, s36
    s_lshr_b32 s43, s42, 3
    s_and_b32 s42, s42, 7
    s_mul_i32 s37, s42, 28
    s_add_u32 s37, s37, s43
    s_and_b32 s38, s42, 1
    s_mul_i32 s38, s38, 28
    s_add_u32 s43, s43, s38
    s_lshr_b32 s39, s43, 3
    s_and_b32 s43, s43, 7
    s_and_b32 s42, s42, 6
    s_lshl_b32 s42, s42, 2
    s_add_u32 s38, s42, s43
    s_lshl_b32 s42, s37, 10
    v_and_b32 v28, 255, v0
    v_lshl_add_u32 v28, v28, 2, s42
    s_lshl_b32 s49, s37, 2
    s_mul_i32 s3, s2, 7168
    s_cmp_eq_u32 s35, 7
    s_cselect_b32 s42, 0, s35
    s_lshl_b32 s42, s42, 7
    s_add_u32 s46, s42, s3
    v_lshrrev_b32 v15, 3, v1
    v_and_b32 v14, 7, v1
    v_mul_u32_u24 v12, 896, v15
    v_lshl_add_u32 v12, v14, 4, v12
    v_and_b32 v11, 3, v0
    v_lshrrev_b32 v16, 2, v0
    v_mul_u32_u24 v18, 3584, v16
    v_lshl_add_u32 v18, v11, 4, v18
    s_lshr_b32 s50, s37, 3
    s_lshl_b32 s50, s50, 1
    s_and_b32 s42, s37, 1
    s_add_u32 s50, s50, s42
    s_bfe_u32 s51, s37, 0x20001
    s_mul_i32 s48, s51, 401408
    s_lshl_b32 s43, s50, 6
    s_add_u32 s48, s48, s43
    v_lshlrev_b32 v13, 4, v0''')
    s.wait(lg=0); stamp(s, 39)
    s('''global_load_dword v29, v28, s[6:7]
    global_load_dword v30, v28, s[8:9]
    s_load_dword s40, s[14:15], s49
    s_load_dword s34, s[32:33], 0''')
    base(s, 44, 4, 's46')
    s('''global_load_dwordx4 v[64:67], v12, s[44:45]
    global_load_dword v31, v28, s[10:11]
    global_load_dword v32, v28, s[12:13]
    s_load_dword s41, s[16:17], s49''')
def code_prefetch(s):
    s('''v_lshlrev_b32 v11, 7, v0
    v_min_u32 v11, CODESZ, v11
    global_load_dword v255, v11, s[68:69]''')
def mktag(s): s('s_xor_b32 s34, s34, 0x5bd1e995')
XS = RB + 8192
def xt_addr(s):
    s('s_lshl_b32 s42, s3, 1'); s(f's_add_u32 s42, s42, {XT+3584}'); base(s, 46, 32, 's42')
    s(f'''s_mul_i32 s42, s35, 1280
    s_add_u32 s42, s42, {XS}
    v_mul_u32_u24 v15, 160, v15
    v_lshl_add_u32 v14, v14, 4, v15
    v_add_u32 v14, s42, v14
    v_and_b32 v15, 3, v1
    v_mul_u32_u24 v15, 320, v15
    v_lshrrev_b32 v16, 2, v1
    v_lshl_add_u32 v15, v16, 3, v15
    v_add_u32 v15, s42, v15''')
def xt_finish(s):
    s('''ds_write_b128 v14, v[64:67]
    ds_read_b32 v20, v15
    ds_read_b32 v22, v15 offset:160
    ds_read_b32 v24, v15 offset:4
    ds_read_b32 v26, v15 offset:164
    v_mov_b32 v21, s34
    v_mov_b32 v23, s34
    v_mov_b32 v25, s34
    v_mov_b32 v27, s34
    global_store_dwordx4 v13, v[20:23], s[46:47] offset:-3584 sc1
    global_store_dwordx4 v13, v[24:27], s[46:47] offset:3584 sc1''')
def st_issue(s):
    for i in range(1, 7): s(f'global_load_dwordx4 {V(64+4*i,4)}, v12, s[44:45] offset:{128*i}')
def st_prefill(s):
    s('s_lshl_b32 s42, s37, 13'); s(f's_add_u32 s42, s42, {HT+4096}'); base(s, 52, 32, 's42')
    s('v_lshlrev_b32 v17, 4, v1'); s([f'v_mov_b32 v{20+i}, -1' for i in range(4)])
    for i in range(8): s(f'global_store_dwordx4 v17, v[20:23], s[52:53] offset:{1024*i-4096} sc1')
def bf16r(s, d, a):
    s(f'v_cvt_pk_bf16_f32 {d}, {a}, {a}'); s(f'v_and_b32 {d}, 0xffff0000, {d}')
def st_finish(s):
    s('''v_mov_b32 v14, 0x3f803f80
    v_mov_b32 v16, 0
    v_mov_b32 v17, 0
    v_mov_b32 v18, 0
    v_mov_b32 v19, 0''')
    for i in range(28):
        s(f'v_dot2c_f32_bf16 v{16+(i&1)}, v{64+i}, v14'); s(f'v_dot2c_f32_bf16 v{18+(i&1)}, v{64+i}, v{64+i}')
    s('''v_add_f32 v16, v16, v17
    v_add_f32 v18, v18, v19''')
    for d in ('quad_perm:[1,0,3,2]', 'quad_perm:[2,3,0,1]', 'row_half_mirror'):
        s(f'v_add_f32_dpp v16, v16, v16 {d} row_mask:0xf bank_mask:0xf')
        s(f'v_add_f32_dpp v18, v18, v18 {d} row_mask:0xf bank_mask:0xf')
    s(f'''v_mul_f32 v16, {fb(1/448)}, v16
    v_mul_f32 v18, {fb(1/448)}, v18
    v_fma_f32 v18, -v16, v16, v18
    v_max_f32 v18, 0, v18''')
    bf16r(s, 'v18', 'v18'); s(f'v_add_f32 v18, {fb(1e-5)}, v18'); bf16r(s, 'v18', 'v18')
    s('''v_sqrt_f32 v18, v18
    v_mov_b32 v15, s34
    v_cvt_pk_bf16_f32 v14, v16, v18
    v_and_b32 v11, 7, v1
    v_cmp_eq_u32 vcc, 0, v11
    s_lshl_b32 s42, s2, 6''')
    s(f's_add_u32 s42, s42, {STATS}'); base(s, 46, 32, 's42')
    s('''s_and_saveexec_b64 s[48:49], vcc
    global_store_dwordx2 v1, v[14:15], s[46:47] sc1
    s_mov_b64 exec, s[48:49]''')
def tr_addr(s, d, t):
    s(f'''v_lshrrev_b32 {d}, 5, v1
    v_bfe_u32 {t}, v1, 2, 2
    v_lshl_add_u32 {d}, {d}, 3, {t}
    v_bfe_u32 {t}, v1, 4, 1
    v_lshlrev_b32 {d}, 6, {d}
    v_lshl_add_u32 {d}, {t}, 5, {d}
    v_and_b32 {t}, 3, v1
    v_lshl_add_u32 {d}, {t}, 3, {d}''')
def w1_issue(s):
    base(s, 52, 20, 's48'); s('global_load_dwordx4 v[92:95], v18, s[52:53]')
def w1_unit(s):
    s(f'v_add_u32 v19, {RB}, v13')
    tr_addr(s, 'v33', 'v11')
    s(f'''s_lshl_b32 s42, s35, 10
    s_add_u32 s42, s42, {RB}
    v_add_u32 v33, s42, v33
    s_mul_i32 s42, s50, 28
    s_mul_i32 s43, s51, 7
    s_add_u32 s42, s42, s43
    s_lshl_b32 s42, s42, 10
    s_add_u32 s42, s42, {W1S}'''); base(s, 52, 32, 's42')
def w1_unit2(s):
    s('''ds_write_b128 v19, v[92:95]
    ds_read_b64_tr_b16 v[96:97], v33
    ds_read_b64_tr_b16 v[98:99], v33 offset:256
    global_store_dwordx4 v13, v[96:99], s[52:53] sc1''')
def w1_flag(s, vm=0):
    s('''s_lshl_b32 s42, s50, 2
    s_add_u32 s42, s42, s51
    s_lshl_b32 s42, s42, 5
    s_add_u32 s42, s42, s35
    s_lshl_b32 s42, s42, 2''')
    s(f's_add_u32 s42, s42, {W1F}'); base(s, 52, 32, 's42')
    s('''v_mov_b32 v18, 0
    v_mov_b32 v19, s34''')
    s.wait(vm=vm)
    s('''s_mov_b64 exec, 1
    global_store_dword v18, v19, s[52:53] sc1
    s_mov_b64 exec, -1''')
def exp_addr(s):
    s(f'''v_and_b32 v11, 255, v0
    v_lshlrev_b32 v11, 3, v11
    v_sub_u32 v11, 2047, v11
    v_cvt_f32_u32 v11, v11
    s_lshr_b32 s42, s35, 2
    s_mul_i32 s42, s42, {2*GS}''')
    for e in range(9): s(f'v_add_f32 v{34+e}, {fb(-e)}, v11')
    s('v_max_f32 v42, 0, v42')
    for e in range(0, 9, 2): s(f'v_cvt_pk_bf16_f32 v{34+e}, v{34+e}, v{34+min(e+1,8)}')
    for e in range(0, 9, 2):
        if e < 8: s(f'v_and_b32 v{35+e}, 0xffff0000, v{34+e}')
        s(f'v_lshlrev_b32 v{34+e}, 16, v{34+e}')
    for e in range(9): s(f'v_cvt_u32_f32 v{34+e}, v{34+e}')
    for e in range(9):
        p = f'v{34+e}'; d = f'v{2+e}'
        s(f'''v_lshrrev_b32 {d}, 8, {p}
        v_and_b32 v11, 7, {p}
        v_lshl_add_u32 {d}, {d}, 3, v11
        v_bfe_u32 v11, {p}, 3, 5
        v_lshl_add_u32 {d}, {d}, 5, v11
        v_lshl_add_u32 {d}, {d}, 2, s42''')
def kg_setup(s, isB):
    lo = LOG2E - struct.unpack('<f', struct.pack('<f', LOG2E))[0]
    s(f'''s_and_b32 s42, s35, 2
    s_lshl_b32 s42, s42, 3
    s_lshr_b32 s43, s40, s42
    s_lshl_b32 s43, s43, 16
    s_mov_b32 s48, {fb(LOG2E)}
    v_mov_b32 v39, s43
    v_mul_f32 v38, s48, v39
    v_fma_f32 v40, s48, v39, -v38
    v_fmac_f32 v40, {fb(lo)}, v39
    v_exp_f32 v38, v38
    v_mul_f32 v40, {fb(math.log(2))}, v40
    v_fmac_f32 v38, v38, v40''')
    bf16r(s, 'v38', 'v38')
    s(f'''s_and_b32 s42, s35, 3
    s_mul_i32 s42, s42, {GS}
    s_add_u32 s54, s42, {HI if isB else 0}
    v_lshl_add_u32 v33, v1, 3, s54
    v_lshlrev_b32 v34, 16, v29
    v_and_b32 v35, 0xffff0000, v29
    v_mul_f32 v34, s48, v34
    v_mul_f32 v35, s48, v35
    v_exp_f32 v34, v34
    v_exp_f32 v35, v35
    v_lshlrev_b32 v36, 16, v30
    v_and_b32 v37, 0xffff0000, v30
    v_cvt_pk_bf16_f32 v35, v34, v35
    v_mul_f32 v36, v38, v36
    v_mul_f32 v37, v38, v37
    v_lshlrev_b32 v34, 16, v35
    v_and_b32 v35, 0xffff0000, v35
    v_mul_f32 v34, v38, v34
    v_mul_f32 v35, v38, v35
    v_mul_f32 v36, {fb((-1 if isB else 1)/(2*math.pi))}, v36
    v_mul_f32 v37, {fb((-1 if isB else 1)/(2*math.pi))}, v37
    v_mul_f32 v34, {fb(-LOG2E)}, v34
    v_mul_f32 v35, {fb(-LOG2E)}, v35''')
def cpow(s, d, p):
    s(f'''v_mul_f32 v60, {fb(p)}, v34
    v_mul_f32 v61, {fb(p)}, v35
    v_mul_f32 v62, {fb(p)}, v36
    v_mul_f32 v63, {fb(p)}, v37
    v_exp_f32 v60, v60
    v_exp_f32 v61, v61
    v_fract_f32 v62, v62
    v_fract_f32 v63, v63
    v_cos_f32 v{d}, v62
    v_cos_f32 v{d+1}, v63
    v_sin_f32 v{d+2}, v62
    v_sin_f32 v{d+3}, v63
    v_pk_mul_f32 {V(d,2)}, {V(d,2)}, v[60:61]
    v_pk_mul_f32 {V(d+2,2)}, {V(d+2,2)}, v[60:61]''')
def cmul(d, a, m, t):
    return [f'v_pk_mul_f32 {V(t,2)}, {V(a,2)}, {V(m,2)}', f'v_pk_mul_f32 {V(t+2,2)}, {V(a,2)}, {V(m+2,2)}',
            f'v_pk_fma_f32 {V(d,2)}, {V(a+2,2)}, {V(m+2,2)}, {V(t,2)} neg_lo:[1,0,0] neg_hi:[1,0,0]',
            f'v_pk_fma_f32 {V(d+2,2)}, {V(a+2,2)}, {V(m,2)}, {V(t+2,2)}']
cw = [0, 0]
def crow(a, row, k=0):
    c = 128 + 6 * k + 2 * (cw[k] % 3); cw[k] += 1
    return [f'v_cvt_pk_bf16_f32 v{c}, v{a}, v{a+1}', f'v_cvt_pk_bf16_f32 v{c+1}, v{a+2}, v{a+3}', f'ds_write_b64 v33, {V(c,2)} offset:{row*ROW}']
def zipl(a, b):
    o = []
    for i in range(max(len(a), len(b))): o += a[i:i+1] + b[i:i+1]
    return o
def kg_lo(s, mid, fill=[]):
    cpow(s, 40, 8); cpow(s, 48, 128)
    s('''v_mov_b32 v128, 0x3f803f80
    v_mov_b32 v129, 0
    ds_write_b64 v33, v[128:129]'''); cw[0] = 1
    a = crow(40, 1) + cmul(44, 40, 40, 52) + crow(44, 2); b = crow(48, 16, 1)
    for j in range(3, 16): a += cmul(44, 44, 40, 52) + crow(44, j)
    for j in range(17, 32): b += cmul(48, 48, 40, 56) + crow(48, j, 1)
    o = weave(zipl(a, b), fill, 0, 100); n = len(o) * 2 // 3; s(o[:n]); mid(s); s(o[n:])
HROW = {256:8, 258:9, 512:10, 768:11, 260:12, 262:13, 516:14, 772:15, 1024:16, 1280:17, 1536:18, 1792:19, 2048:24}
def kg_hi(s, mid, fill=[]):
    cpow(s, 40, 1); cpow(s, 44, 256)
    s('''v_add_f32 v38, v38, v38
    v_lshlrev_b32 v48, 16, v31
    v_and_b32 v49, 0xffff0000, v31
    v_lshlrev_b32 v50, 16, v32
    v_and_b32 v51, 0xffff0000, v32
    v_mul_f32 v48, v38, v48
    v_mul_f32 v49, v38, v49
    v_mul_f32 v50, -v38, v50
    v_mul_f32 v51, -v38, v51''')
    s(cmul(52, 48, 44, 60))
    a = crow(48, 0); b = crow(52, 8, 1)
    for p in range(1, 8):
        a += cmul(48, 48, 40, 56) + crow(48, p)
        if p in (2, 6): a += cmul(124, 48, 44, 56) + crow(124, HROW[256+p])
        if p == 4: a += cmul(140, 48, 44, 56) + crow(140, 12)
    for p in range(512, 2049, 256): b += cmul(52, 52, 44, 60) + crow(52, HROW[p], 1)
    b += cmul(140, 140, 44, 60) + crow(140, 14, 1) + cmul(140, 140, 44, 60) + crow(140, 15, 1)
    o = weave(zipl(a, b), fill, 0, 60); n = len(o) // 2; s(o[:n]); mid(s); s(o[n:])
def kg_mfma(s):
    s(f'''v_and_b32 v11, 31, v1
    v_lshrrev_b32 v12, 5, v1
    v_mul_u32_u24 v13, {ROW}, v11
    v_lshl_add_u32 v13, v12, 4, v13
    v_add_u32 v13, s54, v13
    v_lshlrev_b32 v12, 9, v12
    v_lshl_add_u32 v12, v11, 2, v12
    v_add_u32 v12, s54, v12''')
def kg_mfma2(s):
    rd = lambda k: [f'ds_read_b128 {V(80+8*(k%6),4)}, v13 offset:{HI+32*k}', f'ds_read_b128 {V(84+8*(k%6),4)}, v13 offset:{32*k}']
    for k in range(5): s(rd(k))
    for k in range(16):
        if k + 5 < 16: s(rd(k + 5))
        s(f'v_mfma_f32_32x32x16_bf16 v[64:79], {V(80+8*(k%6),4)}, {V(84+8*(k%6),4)}, {"0" if k==0 else "v[64:79]"}')
    for r, p in enumerate([0,1,2,3,256,258,512,768,1024,1280,1536,1792,2048]):
        s(f'ds_write_b32 v12, v{64+r} offset:{((p>>8)*8+(p&7))*128}')
def expand(s):
    for e in range(9): s(f'ds_read2st64_b32 {V(12+2*e,2)}, v{2+e} offset0:0 offset1:{GS//256}')
    s(f'''v_and_b32 v11, 255, v0
    s_lshr_b32 s42, s35, 2
    s_mul_i32 s42, s42, {RCH}
    s_add_u32 s42, s42, {RB}
    v_cmp_ne_u32 vcc, 255, v11
    v_lshl_add_u32 v11, v11, 4, s42''')
    for e in range(9): s(f'v_add_f32 v{12+2*e}, v{12+2*e}, v{13+2*e}')
    s('v_cndmask_b32 v28, 0, v28, vcc')
    for i in range(4): s(f'v_cvt_pk_bf16_f32 v{4+i}, v{12+4*i}, v{14+4*i}')
    s('ds_write_b128 v11, v[4:7]')
    for i in range(4): s(f'v_cvt_pk_bf16_f32 v{32+i}, v{14+4*i}, v{16+4*i}')
    s(f'ds_write_b128 v11, v[32:35] offset:{RCP}')
def zero_pads(s):
    s(f'''s_mul_i32 s42, s35, {RCP}
    s_add_u32 s42, s42, {RB+4096-4*RCP}
    v_and_b32 v11, 7, v1
    v_lshl_add_u32 v11, v11, 2, s42
    v_mov_b32 v14, 0
    v_mov_b32 v15, 0
    ds_write_b32 v11, v14
    s_and_b32 s42, s35, 1
    s_mul_i32 s42, s42, {UCH}
    s_add_u32 s42, s42, {UB}
    v_min_u32 v11, 59, v1
    v_lshl_add_u32 v11, v11, 3, s42
    ds_write_b64 v11, v[14:15]''')
def spin_begin(s, l):
    s(f's_mov_b32 s55, {SPIN}'); s.label(l)
def spin_end(s, l):
    s(f'''s_cbranch_vccz {l}x
    s_sub_u32 s55, s55, 1
    s_cmp_lg_u32 s55, 0
    s_cbranch_scc1 {l}'''); s.label(l + 'x')
def ug_addr(s):
    s(f'''v_and_b32 v36, 255, v0
    v_lshrrev_b32 v37, 2, v36
    v_and_b32 v38, 3, v36
    v_mul_u32_u24 v37, 14336, v37
    v_lshl_add_u32 v37, v38, 4, v37
    v_lshlrev_b32 v38, 4, v36
    s_and_b32 s42, s37, 1
    s_mul_i32 s42, s42, 7168
    s_lshr_b32 s43, s37, 1
    s_lshl_b32 s43, s43, 6
    s_add_u32 s42, s42, s43
    s_add_u32 s42, s42, {XT}''')
    base(s, 56, 32, 's42')
    for i in range(1, 4): base(s, 56 + 2*i, 54 + 2*i, 64*14336)
    base(s, 64, 32, STATS + 4096); base(s, 66, 32, STATS + 12288)
def ug_issue(s):
    for i in range(4):
        s(f'global_load_dwordx4 {V(64+4*i,4)}, v38, s[{64+2*(i>>1)}:{65+2*(i>>1)}] offset:{-4096 if i%2==0 else 0} sc1')
        s(f'global_load_dwordx4 {V(80+4*i,4)}, v37, s[{56+2*i}:{57+2*i}] sc1')
def ug_check(s):
    s('v_min_u32 v39, v65, v67'); s('v_max_u32 v40, v65, v67')
    for i in [4,1,5,2,6,3,7]:
        s(f'v_min3_u32 v39, v39, v{65+4*i}, v{67+4*i}'); s(f'v_max3_u32 v40, v40, v{65+4*i}, v{67+4*i}')
    s('''v_xor_b32 v39, s34, v39
    v_xor_b32 v40, s34, v40
    v_or_b32 v39, v39, v40
    v_cmp_ne_u32 vcc, 0, v39''')
def ubuild(s):
    s(f'v_lshlrev_b32 v36, 2, v36'); s(f'v_add_u32 v39, {UB+480}, v36')
    for t in range(8):
        ms = 64 + 2*t; x = 80 + 2*t
        s(f'''v_and_b32 v{ms+1}, 0xffff0000, v{ms}
        v_lshlrev_b32 v{ms}, 16, v{ms}
        v_rcp_f32 v{ms+1}, v{ms+1}
        v_lshlrev_b32 v{96+2*t}, 16, v{x}
        v_and_b32 v{97+2*t}, 0xffff0000, v{x}
        v_pk_add_f32 {V(112+2*t,2)}, {V(96+2*t,2)}, {V(ms,2)} op_sel_hi:[1,0] neg_lo:[0,1] neg_hi:[0,1]
        v_pk_mul_f32 {V(112+2*t,2)}, {V(112+2*t,2)}, {V(ms,2)} op_sel:[0,1]''')
        if t & 1:
            i = t >> 1
            s(f'''v_cvt_pk_bf16_f32 v{48+2*i}, v{110+2*t}, v{112+2*t}
            v_cvt_pk_bf16_f32 v{49+2*i}, v{111+2*t}, v{113+2*t}
            ds_write_b32 v39, v{48+2*i} offset:{1024*i}
            ds_write_b32 v39, v{49+2*i} offset:{1024*i+UCH}''')
def vbuild(s):
    s(f'''s_lshl_b32 s42, s41, 16
    s_and_b32 s43, s41, 0xffff0000
    v_and_b32 v36, 255, v0
    v_lshrrev_b32 v37, 7, v36
    v_mul_u32_u24 v37, 1280, v37
    v_bfe_u32 v38, v36, 1, 2
    v_mul_u32_u24 v38, 320, v38
    v_add_u32 v37, v37, v38
    v_bfe_u32 v38, v36, 3, 4
    v_lshl_add_u32 v37, v38, 4, v37
    v_and_b32 v38, 1, v36
    v_lshl_add_u32 v37, v38, 3, v37''')
    for i in range(4):
        for ch in range(2):
            d = 64 + 4*i + 2*ch
            s(f'''v_fma_f32 v{d}, v{112+4*i+ch}, s{42+ch}, v{96+4*i+ch}
            v_fma_f32 v{d+1}, v{114+4*i+ch}, s{42+ch}, v{98+4*i+ch}
            ds_write_b64 v37, {V(d,2)} offset:{VB+10240*ch+2560*i}''')
def conv_addr(s):
    s(f'''v_and_b32 v11, 15, v1
    v_lshrrev_b32 v12, 4, v1
    s_lshr_b32 s42, s35, 1
    s_and_b32 s43, s35, 1
    s_mul_i32 s48, s42, {RCH}
    s_lshl_b32 s49, s43, 8
    s_sub_u32 s48, s48, s49
    s_add_u32 s48, s48, {RB + 2*(2031 - 32*(8+3)) }
    v_lshlrev_b32 v13, 3, v12
    v_sub_u32 v13, v13, v11
    v_and_b32 v14, 1, v11
    v_mul_u32_u24 v14, {RCP-2}, v14
    v_lshl_add_u32 v13, v13, 1, s48
    v_add_u32 v13, {RCP-2}, v13
    v_sub_u32 v2, v13, v14
    v_subrev_u32 v3, 1024, v2
    v_subrev_u32 v4, 2048, v2
    v_subrev_u32 v5, 3072, v2
    s_mul_i32 s48, s42, {UCH}
    s_sub_u32 s48, s48, s49
    s_add_u32 s48, s48, {UB + 448 - 192}
    v_lshlrev_b32 v6, 5, v11
    v_lshl_add_u32 v6, v12, 4, v6
    v_add_u32 v6, s48, v6
    s_mul_i32 s48, s35, 10240
    v_mul_u32_u24 v7, 320, v12
    v_lshl_add_u32 v7, v11, 4, v7
    v_add_u32 v7, s48, v7''')
def conv(s, fill, f0, f1):
    NA, NB = 5, 10
    mf = [(r, sg, mu) for r in range(4) for sg in range(8) for mu in range(8 - sg)]
    last = {}
    for n, (r, sg, mu) in enumerate(mf): last[('A', r, sg)] = n; last[('B', r, mu)] = n
    order = []
    for (r, sg, mu) in mf:
        for k in (('A', r, sg), ('B', r, mu)):
            if k not in order: order.append(k)
    qa = [k for k in order if k[0] == 'A']; qb = [k for k in order if k[0] == 'B']
    fa = [16 + 4*i for i in range(NA)]; fbb = [96 + 4*i for i in range(NB)]; slot = {}
    def ld(k):
        if k[0] == 'A':
            d = slot[k] = fa.pop(0); o = 128*(1 - (k[2] & 1)) + 16*(3 - k[1]); a = 2 + (k[2] >> 1)
            return [f'ds_read2_b32 {V(d,2)}, v{a} offset0:{o} offset1:{o+1}', f'ds_read2_b32 {V(d+2,2)}, v{a} offset0:{o+2} offset1:{o+3}']
        d = slot[k] = fbb.pop(0)
        return [f'ds_read_b128 {V(d,4)}, v6 offset:{512*k[2] + 64*(3-k[1])}']
    s(ld(qa.pop(0)))
    for i in range(8): s(ld(qb.pop(0)))
    items = []; seen = set()
    for n, (r, sg, mu) in enumerate(mf):
        R = sg + mu; acc = V(64 + 4*R, 4)
        it = [f'v_mfma_f32_16x16x32_bf16 {acc}, {V(slot[("A",r,sg)],4)}, {V(slot[("B",r,mu)],4)}, {acc if R in seen else 0}']
        seen.add(R)
        if last[('A', r, sg)] == n: fa.append(slot[('A', r, sg)])
        if last[('B', r, mu)] == n: fbb.append(slot[('B', r, mu)])
        if qa and fa: it += ld(qa.pop(0))
        if qb and fbb: it += ld(qb.pop(0))
        items.append(it)
    yw = lambda R: f'ds_write_b128 v7, {V(64+4*R,4)} offset:{YB+1280*R}'
    for R in range(5): items[mf.index((3, R, 0)) + 6].append(yw(R))
    s(weave(items, fill, f0, f1))
    for R in range(5, 8): s(yw(R))
def epilogue(s):
    s(f'''v_and_b32 v36, 255, v0
    v_lshrrev_b32 v37, 5, v36
    v_mul_u32_u24 v37, 1280, v37
    v_and_b32 v38, 1, v36
    v_mul_u32_u24 v38, 640, v38
    v_add_u32 v37, v37, v38
    v_bfe_u32 v38, v36, 1, 4
    v_lshl_add_u32 v37, v38, 4, v37
    s_lshr_b32 s42, s35, 2
    s_mul_i32 s43, s42, 10240
    v_add_u32 v38, s43, v37
    v_add_u32 v37, s43, v38
    v_lshlrev_b32 v36, 4, v0
    s_lshl_b32 s42, s37, 13
    s_add_u32 s42, s42, {HT}''')
    base(s, 18, 32, 's42')
def epilogue2(s):
    for h in range(2):
        s(f'''ds_read_b128 {V(16+4*h,4)}, v38 offset:{VB+320*h}
        ds_read_b128 {V(24+4*h,4)}, v37 offset:{YB+320*h}
        ds_read_b128 {V(48+4*h,4)}, v37 offset:{YB+10240+320*h}''')
    for i in range(4):
        s(f'''v_pk_add_f32 {V(24+2*i,2)}, {V(24+2*i,2)}, {V(48+2*i,2)}
        v_pk_add_f32 {V(16+2*i,2)}, {V(16+2*i,2)}, {V(24+2*i,2)}
        v_cvt_pk_bf16_f32 v{40+i}, v{16+2*i}, v{17+2*i}''')
    s('global_store_dwordx4 v36, v[40:43], s[18:19] sc1')
```

```python
from gen1 import *
import gen1
def flag_hf(s, d):
    base(s, d, 32, W1F + 28)
    s(f'''v_and_b32 v44, 255, v0
    v_min_u32 v44, 223, v44
    v_lshlrev_b32 v44, 7, v44
    global_load_dword v45, v44, s[{d}:{d+1}] sc1''')
def flag_addr(s, d, off, unit, w1=False):
    s(f'''s_lshl_b32 s42, {unit}, 9
    s_add_u32 s42, s42, {off}'''); base(s, d, 32, 's42')
    s(f'''v_and_b32 v44, 3, v1
    v_lshlrev_b32 v44, 7, v44''')
    if w1: s('''v_bfe_u32 v45, v1, 2, 3
    v_min_u32 v45, 6, v45
    v_lshl_add_u32 v44, v45, 2, v44''')
    s(f'''global_load_dword v45, v44, s[{d}:{d+1}] sc1''')
def flag_wait(s, d, l):
    s('v_cmp_ne_u32 vcc, s34, v45')
    def body(s):
        spin_begin(s, l)
        s(f'global_load_dword v45, v44, s[{d}:{d+1}] sc1'); s('v_cmp_ne_u32 vcc, s34, v45')
        spin_end(s, l)
    s.cond('s_cbranch_vccz', body)
def w1_addr(s):
    s('''s_lshl_b32 s50, s39, 3
    s_add_u32 s50, s50, s35''')
    flag_addr(s, 52, W1F, 's50', True)
def w1_loads(va='v10'):
    o = L(f'''s_mul_i32 s42, s50, 28672
    s_add_u32 s42, s42, {W1S+4096}
    s_add_u32 s52, s32, s42
    s_addc_u32 s53, s33, 0
    v_lshlrev_b32 {va}, 4, v1''')
    o = [o]
    for k in range(28):
        it = [f'global_load_dwordx4 {V(144+4*k,4)}, {va}, s[52:53] offset:{1024*(k%8)-4096} sc1']
        if k % 8 == 7: it += ['s_add_u32 s52, s52, 8192', 's_addc_u32 s53, s53, 0']
        o.append(it)
    return o
def part_base(s, d, dst, slot, extra=0):
    s(f'''s_mul_i32 s42, s38, 7
    s_add_u32 s42, s42, {dst}
    s_mul_i32 s42, s42, 49152
    s_add_u32 s42, s42, {PART + slot*8192 + extra}'''); base(s, d, 32, 's42')

AB = set()
def colsum_pre(s, isB):
    s('''s_lshl_b32 s42, s50, 6
    v_and_b32 v12, 31, v1
    v_lshl_add_u32 v12, v12, 1, s42
    global_load_ushort v13, v12, s[22:23]''')
    if isB: s('''s_lshl_b32 s42, s39, 2
        s_and_b32 s43, s35, 3
        s_add_u32 s42, s42, s43
        s_lshl_b32 s42, s42, 5
        v_lshrrev_b32 v12, 4, v1
        v_lshl_add_u32 v12, v12, 3, s42
        global_load_dwordx2 v[46:47], v12, s[26:27]''')
def colsum(s, isB):
    s('''v_mov_b32 v14, 0x3f803f80
    v_mov_b32 v16, 0
    v_mov_b32 v17, 0''')
    for i in range(112): s(f'v_dot2c_f32_bf16 v{16+(i&1)}, v{144+i}, v14')
    s('''v_add_f32 v16, v16, v17
    v_mov_b32 v17, v16
    v_permlane32_swap_b32 v16, v17
    v_add_f32 v16, v16, v17
    v_cvt_pk_bf16_f32 v9, v16, v16
    v_and_b32 v17, 0xffff0000, v9
    v_sub_f32 v16, v16, v17
    v_cvt_pk_bf16_f32 v10, v16, 0
    v_lshl_or_b32 v8, v13, 16, v13
    v_mov_b32 v11, 0
    v_mov_b32 v35, 0
    v_cmp_le_u32 vcc, 32, v1
    v_cndmask_b32 v32, 0, v8, vcc
    v_cndmask_b32 v33, 0, v9, vcc
    v_cndmask_b32 v34, 0, v10, vcc
    v_sub_u32 v8, v8, v32
    v_sub_u32 v9, v9, v33
    v_sub_u32 v10, v10, v34''')
    if isB: s([f'v_lshlrev_b32 v{40+2*i}, 16, v{46+i}' for i in range(2)] + [f'v_and_b32 v{41+2*i}, 0xffff0000, v{46+i}' for i in range(2)])
def hg_addr(s):
    s(f'''v_lshrrev_b32 v12, 3, v0
    v_and_b32 v15, 7, v0
    v_lshlrev_b32 v2, 12, v12
    v_lshl_add_u32 v2, v15, 4, v2
    v_lshrrev_b32 v14, 2, v15
    v_mul_u32_u24 v14, {HH}, v14
    v_and_b32 v15, 3, v15
    v_lshl_add_u32 v14, v15, 4, v14
    v_lshl_add_u32 v3, v12, 6, v14
    v_add_u32 v3, {HB}, v3
    s_lshl_b32 s42, s38, 7
    s_add_u32 s42, s42, {HT}''')
    base(s, 56, 32, 's42')
    for i in range(1, 7): base(s, 56 + 2*i, 54 + 2*i, 64*4096)
    tr_addr(s, 'v4', 'v12'); s(f'v_add_u32 v4, {HB}, v4')
def max_chain(s, d, a, n, hook=None):
    for i in range(0, n, 2):
        if hook and i % 4 == 0: s(hook(i // 4))
        s(f'v_max3_u32 {d}, {d}, v{a+i}, v{a+i+1}' if i else f'v_max_u32 {d}, v{a}, v{a+1}')
    s(f'v_cmp_eq_u32 vcc, -1, {d}')
def hg_issue(s):
    for i in range(7): s(f'global_load_dwordx4 {V(64+4*i,4)}, v2, s[{56+2*i}:{57+2*i}] sc1')
def hg_check(s): max_chain(s, 'v12', 64, 28, lambda i: f'ds_write_b128 v3, {V(64+4*i,4)} offset:{4096*i}')
def retry(s, l, issue, check):
    def body(s): spin_begin(s, l); issue(s); check(s); spin_end(s, l)
    s.cond('s_cbranch_vccz', body)
def mlp_addr(s, isB):
    s(f'''s_lshl_b32 s42, s35, 12
    v_lshrrev_b32 v12, 5, v1
    v_and_b32 v14, 31, v1
    v_lshlrev_b32 v39, 10, v12
    v_lshl_add_u32 v39, v14, 4, v39
    v_add_u32 v6, s42, v39
    s_and_b32 s42, s35, 1
    s_lshr_b32 s43, s35, 1
    s_lshl_b32 s44, s42, 10
    s_lshl_b32 s45, s43, 2
    s_add_u32 s44, s44, s45
    v_lshlrev_b32 v14, 5, v14
    v_lshl_add_u32 v14, v12, 4, v14
    v_add_u32 v47, s44, v14
    s_mul_i32 s42, s42, {HH}
    s_mul_i32 s43, s43, 7168
    s_add_u32 s42, s42, s43
    v_add_u32 v5, s42, v4
    v_lshrrev_b32 v12, 4, v1
    v_and_b32 v14, 15, v1
    v_lshlrev_b32 v7, 10, v12
    v_lshl_add_u32 v7, v14, 4, v7
    s_and_b32 s43, s35, 3
    s_mul_i32 s42, s39, 229376
    s_mul_i32 s44, s43, 49152
    s_add_u32 s44, s44, s42
    s_add_u32 s44, s44, {W2S + 4096 + (32768 if isB else 0)}
    s_lshl_b32 s43, s43, 13
    s_add_u32 s43, s43, s42
    s_add_u32 s43, s43, {W2S + 4096 + 196608}''')
    base(s, 44, 32, 's44'); base(s, 46, 44, 8192)
    if isB: base(s, 48, 32, 's43')
    else: base(s, 48, 46, 8192); base(s, 52, 48, 8192)
def w2reg(n): return 96 + 4*n
def w2ld(n, isB):
    b = [44, 46, 48, 52][n >> 3]; o = n & 7
    return f'global_load_dwordx4 {V(w2reg(n),4)}, v2, s[{b}:{b+1}] offset:{1024*o-4096} sc1'
def g1(extra):
    rd = lambda n: [f'ds_read_b64_tr_b16 {V(48+4*(n%4)+2*x,2)}, v4 offset:{(n//28)*HH+1024*(n%28)+256*x}' for x in range(2)]
    pre = rd(0) + rd(1) + rd(2); it = []
    for n in range(56):
        k = n % 28; acc = V(64 + 16*(n // 28), 16)
        x = rd(n + 3) if n + 3 < 56 else []
        it.append(x + [f'v_mfma_f32_32x32x16_bf16 {acc}, {V(144+4*k,4)}, {V(48+4*(n%4),4)}, {acc if k else 0}'] + extra(n))
    return pre, it
SR = list(range(16, 32)) + list(range(80, 92))
def stats_a(): return [f'ds_read_b64_tr_b16 {V(SR[2*i],2)}, v5 offset:{1024*(i>>1)+256*(i&1)}' for i in range(14)]
def stats_b():
    o = []
    for i in range(28):
        a, b = (36, 37) if i & 1 else (44, 45)
        if i == 0: o += ['v_lshlrev_b32 v92, 16, v16', 'v_and_b32 v94, 0xffff0000, v16', 'v_mul_f32 v93, v92, v92', 'v_mul_f32 v95, v94, v94']
        else: o += [f'v_lshlrev_b32 v{a}, 16, v{SR[i]}', f'v_and_b32 v{b}, 0xffff0000, v{SR[i]}', f'v_add_f32 v92, v92, v{a}',
                    f'v_add_f32 v94, v94, v{b}', f'v_fmac_f32 v93, v{a}, v{a}', f'v_fmac_f32 v95, v{b}, v{b}']
    return o + L(f'''v_add_f32 v92, v92, v94
    v_add_f32 v93, v93, v95
    v_lshlrev_b32 v5, 5, v1
    v_permlane32_swap_b32 v92, v93
    v_add_f32 v92, v92, v93
    ds_write_b32 v47, v92 offset:{SB}''')
K0 = -2 * math.sqrt(2 / math.pi) * LOG2E
def stats_fin():
    o = [f'ds_read_b128 v[16:19], v5 offset:{SB}', f'ds_read_b128 v[20:23], v5 offset:{SB+16}']
    o += L('''v_add_f32 v16, v16, v17
    v_add_f32 v18, v18, v19
    v_add_f32 v20, v20, v21
    v_add_f32 v22, v22, v23
    v_add_f32 v16, v16, v18
    v_add_f32 v17, v20, v22''')
    m, q, a, b, c, d = range(16, 22); cs = 36
    r = lambda x, y: [f'v_cvt_pk_bf16_f32 v{x}, v{y}, v{y}', f'v_and_b32 v{x}, 0xffff0000, v{x}']
    o += [f'v_mul_f32 v{b}, {fb(-1/448)}, v{m}', f'v_mul_f32 v{q}, {fb(1/448)}, v{q}', f'v_fma_f32 v{q}, -v{b}, v{b}, v{q}', f'v_max_f32 v{q}, 0, v{q}']
    o += [f'v_add_f32 v{a}, {fb(1e-5)}, v{q}', f'v_sqrt_f32 v{a}, v{a}'] + r(d, b) + r(a, a)
    o += [f'v_rcp_f32 v{c}, v{a}', f'v_sub_f32 v{m}, v{b}, v{d}', f'v_mul_f32 v{q}, v{q}, v{c}', f'v_cvt_pk_bf16_f32 v13, v{d}, v{m}', f'v_mul_f32 v{q}, v{q}, v{c}']
    o += r(q, q) + [f'v_add_f32 v{q}, {fb(1e-5)}, v{q}', f'v_sqrt_f32 v{q}, v{q}', f'v_lshrrev_b32 v14, 16, v{d}'] + r(q, q)
    o += [f'v_mul_f32 v{cs}, v{a}, v{q}', f'v_rcp_f32 v{c}, v{cs}'] + r(a, cs)
    o += [f'v_sub_f32 v{q}, v{cs}, v{a}', f'v_mul_f32 v{cs+1}, {fb(K0)}, v{c}', f'v_cvt_pk_bf16_f32 v12, v{a}, v{q}', 'v_mov_b32 v15, 0',
          f'v_mul_f32 v{c}, v{c}, v{c}', f'v_mul_f32 v{c}, {fb(0.044715)}, v{c}', f'v_mul_f32 v{cs+2}, v{c}, v{cs+1}']
    o += [f'v_mov_b32 v{44+i}, v{36+i}' for i in range(3)] + [f'v_permlane32_swap_b32 v{36+i}, v{44+i}' for i in range(3)]
    return o
def gelu(acc, cs, half):
    o = []
    for u in range(4):
        T = lambda i: 16 + 4*(u & 1) + i
        for f in (lambda i: f'v_mul_f32 v{T(i)}, v{acc+4*u+i}, v{acc+4*u+i}', lambda i: f'v_fma_f32 v{T(i)}, v{T(i)}, v{cs+2}, v{cs+1}',
                  lambda i: f'v_mul_f32 v{T(i)}, v{T(i)}, v{acc+4*u+i}', lambda i: f'v_exp_f32 v{T(i)}, v{T(i)}',
                  lambda i: f'v_fma_f32 v{T(i)}, v{T(i)}, v{cs}, v{cs}', lambda i: f'v_rcp_f32 v{T(i)}, v{T(i)}',
                  lambda i: f'v_mul_f32 v{T(i)}, v{T(i)}, v{acc+4*u+i}'):
            o += [f(i) for i in range(4)]
        o += [f'v_cvt_pk_bf16_f32 v{24+2*u}, v{T(0)}, v{T(1)}', f'v_cvt_pk_bf16_f32 v{25+2*u}, v{T(2)}, v{T(3)}']
        if u & 1: o.append(f'ds_write_b128 v6, {V(22+2*u,4)} offset:{GB+(u>>1)*2048+half*512}')
    return o
def g2(isB):
    fr = []
    r32 = lambda h, ks: f'v39 offset:{GB+2048*ks+512*h}'
    m32 = lambda acc, n, first: (lambda b: f'v_mfma_f32_32x32x16_bf16 {V(acc,16)}, {V(w2reg(n),4)}, {b}, {0 if first else V(acc,16)}')
    m16 = lambda acc, n: (lambda b: f'v_mfma_f32_16x16x32_bf16 {V(acc,4)}, {V(w2reg(n),4)}, {b}, {V(acc,4)}')
    if not isB:
        for h in range(2):
            for T in range(2):
                for ks in range(16): fr.append((r32(h, ks), [m32((224, 240, 48, 80)[2*h + T], 16*T + ks, ks == 0)]))
    else:
        F = lambda h, ks: (r32(h, ks), [m32(208 + 16*h, ks, ks == 0)])
        Ow = lambda h, k, T: (f'v7 offset:{GB+4096*k+512*h+256*T}', [m16(192 + 8*h + 4*T, 16 + k)])
        for h in range(2): fr += [F(h, ks) for ks in range(16)] + [Ow(h, k, T) for k in range(8) for T in range(2)]
    rd = lambda n: f'ds_read_b128 {V(64+4*(n%4),4)}, {fr[n][0]}'
    pre = [rd(0), rd(1), rd(2)]; it = []
    for n, (_, ms) in enumerate(fr):
        for i, m in enumerate(ms):
            it.append(([rd(n + 3)] if i == 0 and n + 3 < len(fr) else []) + [m(V(64 + 4*(n % 4), 4))])
    return pre, it
def own_init():
    o = L(f'''s_lshl_b32 s42, s39, 2
    s_and_b32 s43, s35, 3
    s_add_u32 s42, s42, s43
    s_lshl_b32 s42, s42, 10
    s_add_u32 s42, s42, {HB}
    v_lshrrev_b32 v3, 2, v1
    v_lshlrev_b32 v3, 6, v3
    v_and_b32 v5, 3, v1
    v_lshl_add_u32 v3, v5, 3, v3
    v_add_u32 v3, s42, v3''')
    o += [f'ds_read_b64_tr_b16 {V(194+4*T,2)}, v3 offset:{(T>>1)*HH+32*(T&1)}' for T in range(4)]
    for T in range(4):
        a = 192 + 4*T
        o += [f'v_lshlrev_b32 v{a}, 16, v{a+2}', f'v_and_b32 v{a+1}, 0xffff0000, v{a+2}', f'v_lshlrev_b32 v{a+2}, 16, v{a+3}', f'v_and_b32 v{a+3}, 0xffff0000, v{a+3}']
        o += [f'v_add_f32 v{a+i}, v{a+i}, v{40+i}' for i in range(4)]
    return o
def send(half, acc, b, t1=44):
    o = []
    for x in range(2):
        t = (40, t1)[x]
        o += [f'v_cvt_pk_bf16_f32 v{t+i}, v{acc+8*x+2*i}, v{acc+8*x+2*i+1}' for i in range(4)]
        o += [f'global_store_dwordx4 v2, {V(t,4)}, s[{b}:{b+1}] offset:{4096*half-4096+1024*x} sc1']
    return o
def own_w(half): return [f'ds_write_b128 v5, {V(192+8*half+4*T,4)} offset:{OB+(32*half+16*T)*272}' for T in range(2)]
class Rec(list):
    def __call__(s, t): s.extend(L(t) if isinstance(t, str) else t)
def send_addr(isB):
    s = Rec()
    s('s_and_b32 s43, s35, 3'); s('s_mul_i32 s52, s43, 3')
    for d in ([2] if isB else [0, 1]):
        b = 44 + 2*(d & 1)
        s(f'''s_add_u32 s53, s52, {d}
        s_lshr_b32 s48, s53, 1
        s_and_b32 s53, s53, 1
        s_add_u32 s49, s48, s39
        s_add_u32 s49, s49, 1
        s_cmp_ge_u32 s49, 7
        s_cselect_b32 s42, 7, 0
        s_sub_u32 s49, s49, s42
        s_mul_i32 s42, s38, 7
        s_add_u32 s49, s49, s42
        s_mul_i32 s49, s49, 6
        s_add_u32 s49, s49, s48
        s_lshl_b32 s49, s49, 2
        s_add_u32 s49, s49, s53
        s_lshl_b32 s49, s49, 11
        s_add_u32 s49, s49, {PART + 4096}''')
        s([[f's_add_u32 s{b}, s32, s49', f's_addc_u32 s{b+1}, s33, 0']])
    s(f'''s_mul_i32 s42, s38, 7
    s_add_u32 s42, s42, s39
    s_mul_i32 s42, s42, 49152
    s_add_u32 s42, s42, {PART}''')
    s([['s_add_u32 s56, s32, s42', 's_addc_u32 s57, s33, 0']] + [[f's_add_u32 s{56+2*i}, s{54+2*i}, 8192', f's_addc_u32 s{57+2*i}, s{55+2*i}, 0'] for i in range(1, 6)])
    s('''s_mul_i32 s42, s38, 57344
    s_lshl_b32 s48, s39, 7
    s_add_u32 s42, s42, s48''')
    s([['s_add_u32 s68, s28, s42', 's_addc_u32 s69, s29, 0']])
    s('''v_lshrrev_b32 v12, 3, v0
    v_and_b32 v13, 7, v0
    v_lshrrev_b32 v8, 5, v12
    v_lshlrev_b32 v8, 12, v8
    v_lshl_add_u32 v8, v13, 9, v8
    v_and_b32 v14, 31, v12
    v_lshl_add_u32 v8, v14, 4, v8
    v_mul_u32_u24 v9, 272, v12
    v_lshl_add_u32 v9, v13, 5, v9
    v_mul_u32_u24 v10, 896, v12
    v_lshl_add_u32 v10, v13, 4, v10''')
    if isB: s('''v_and_b32 v5, 15, v1
    v_mul_u32_u24 v5, 272, v5
    v_lshrrev_b32 v12, 4, v1
    v_lshl_add_u32 v5, v12, 4, v5
    s_lshl_b32 s43, s43, 6
    v_add_u32 v5, s43, v5''')
    return list(s)
def mlp(s, isB, O):
    X = 'B' if isB else 'A'; nw = 24 if isB else 32
    s('v_lshlrev_b32 v2, 4, v1')
    s.barrier(); stamp(s, 8)
    ex = lambda n: [w2ld(n // 2, isB)] if n % 2 == 0 and n < 24 else ([w2ld(n - 16, isB)] if 28 <= n < nw + 16 else [])
    pre, it = g1(ex); n6, n7 = O['n6'], O['n7']
    ext = lambda acc, a: f'v_mfma_f32_32x32x16_bf16 {V(acc,16)}, {V(a,4)}, v[12:15], {V(acc,16)}'
    s(pre + stats_a()); s(weave(it[:n6], stats_b(), 1)); s.barrier(keep=True); stamp(s, 9)
    s(weave(it[n6:28], stats_fin())); s(ext(64, 8))
    s(f's_lshl_b32 s42, s38, 7'); s(f's_add_u32 s42, s42, {F2}'); base(s, 18, 32, 's42')
    s('global_load_dword v47, v11, s[18:19] sc1')
    s(weave(it[28:n7], gelu(64, 36, 0), 3)); s.barrier(keep=True); stamp(s, 10)
    pre2, it2 = g2(isB); n8 = O['n8']; sa = send_addr(isB)
    s('v_cmp_ne_u32 vcc, s34, v47')
    retry(s, 'Lf2' + X, lambda s: s('global_load_dword v47, v11, s[18:19] sc1'), lambda s: s('v_cmp_ne_u32 vcc, s34, v47'))
    s(weave(it[n7:], pre2 + (own_init() if isB else []) + [x for x in sa if not str(x).startswith('v_')])); s(ext(80, 32))
    ge = gelu(80, 44, 1); ng = len(ge) * 16 // (n8 - 4)
    s(weave(it2[:19], ge[:ng], 3)); s(weave(it2[19:n8], zipl(ge[ng:], send(0, 208 if isB else 224, 44, 32))))
    s.barrier(keep=True); stamp(s, 11)
    s(weave(it2[n8:34], [x for x in sa if str(x).startswith('v_')]))
    fi = lambda s: [s(f'global_load_dwordx4 {V(16+4*i if i < 5 else 12,4)}, v8, s[{56+2*i}:{57+2*i}] sc1') for i in range(6)]
    fc = lambda s: max_chain(s, 'v11', 12, 24)
    if isB:
        s(weave(it2[34:48], own_w(0), 2)); s(weave(it2[48:], send(1, 224, 44), 5, 9)); s(own_w(1))
    else:
        s(weave(it2[34:48], send(0, 240, 46), 1, 4)); s(weave(it2[48:], send(1, 48, 44), 3, 6)); fi(s); s(send(1, 80, 46))
    stamp(s, 12); s.barrier()
    s(f'ds_read_b128 v[64:67], v9 offset:{OB}'); s(f'ds_read_b128 v[68:71], v9 offset:{OB+16}')
    if isB: s.wait(vm=0); stamp(s, 13); fi(s)
    else: stamp(s, 13)
    fc(s); retry(s, 'Lfin' + X, fi, fc); stamp(s, 14)
    for i in range(6):
        for k in range(4):
            t = 72 + 2*(k & 1)
            s(f'''v_lshlrev_b32 v{t}, 16, v{12+4*i+k}
            v_and_b32 v{t+1}, 0xffff0000, v{12+4*i+k}
            v_pk_add_f32 {V(64+2*k,2)}, {V(64+2*k,2)}, {V(t,2)}''')
    for k in range(4): s(f'v_cvt_pk_bf16_f32 v{76+k}, v{64+2*k}, v{65+2*k}')
    s('global_store_dwordx4 v10, v[76:79], s[68:69] sc1')
def pub_flag(s, off, vm=0):
    def f(s):
        s(f'''s_lshl_b32 s42, s2, 7
        s_add_u32 s42, s42, {off}'''); base(s, 52, 32, 's42')
        s('''v_mov_b32 v2, 0
        v_mov_b32 v3, s34
        s_mov_b64 exec, 1
        global_store_dword v2, v3, s[52:53] sc1
        s_mov_b64 exec, -1''')
    s.wait(vm=vm); s.barrier(); s('s_cmp_lg_u32 s35, 0'); s.cond('s_cbranch_scc1', f)
def helper(s, on, O):
    s('''s_min_u32 s50, s2, 27
    s_mul_i32 s42, s50, 57344''')
    base(s, 52, 24, 's42')
    s('''v_lshrrev_b32 v2, 3, v0
    v_and_b32 v3, 7, v0
    v_mul_u32_u24 v4, 896, v2
    v_lshl_add_u32 v4, v3, 4, v4
    v_mul_u32_u24 v5, 928, v2
    v_lshl_add_u32 v5, v3, 4, v5''')
    xt_addr(s); mktag(s); on(s, 7, xt_finish, True); on(s, 7, st_finish); stamp(s, 4)
    if O['cp']: code_prefetch(s)
    for i in range(7): s(f'global_load_dwordx4 {V(96+4*i,4)}, v4, s[52:53] offset:{128*i}')
    s(f'''s_mul_i32 s42, s2, 344064
    s_add_u32 s42, s42, {PART}'''); base(s, 58, 32, 's42')
    s([f'v_mov_b32 v{60+i}, -1' for i in range(4)])
    def hp(n):
        for i in range(n): s('global_store_dwordx4 v13, v[60:63], s[58:59] sc1'); base(s, 58, 58, 8192)
    hp(O['hp'])
    def w2(s):
        s('''s_and_b32 s42, s35, 1
        s_lshr_b32 s43, s35, 1
        s_lshl_b32 s44, s2, 1
        s_add_u32 s44, s44, s42
        s_lshr_b32 s45, s44, 3
        s_and_b32 s44, s44, 7
        s_mul_i32 s46, s42, 29696
        v_lshrrev_b32 v2, 5, v1
        v_bfe_u32 v3, v1, 2, 3
        v_lshl_add_u32 v6, v2, 4, v3
        v_mul_u32_u24 v6, 928, v6
        v_and_b32 v4, 3, v1
        v_lshl_add_u32 v6, v4, 3, v6
        s_lshl_b32 s47, s45, 7
        s_lshl_b32 s48, s43, 5
        s_add_u32 s47, s47, s48
        s_add_u32 s47, s47, s46
        v_add_u32 v6, s47, v6
        v_bfe_u32 v3, v1, 2, 2
        v_lshl_add_u32 v2, v2, 2, v3
        v_mul_u32_u24 v2, 928, v2
        v_bfe_u32 v3, v1, 4, 1
        v_lshl_add_u32 v2, v3, 5, v2
        v_and_b32 v3, 1, v1
        v_lshl_add_u32 v2, v3, 4, v2
        v_bfe_u32 v3, v1, 1, 1
        v_lshl_add_u32 v2, v3, 3, v2
        s_mul_i32 s49, s43, 3''')
        for d in range(3):
            s(f'''s_add_u32 s47, s49, {d}
            s_lshr_b32 s48, s47, 1
            s_add_u32 s48, s48, s45
            s_add_u32 s48, s48, 1
            s_cmp_ge_u32 s48, 7
            s_cselect_b32 s42, 7, 0
            s_sub_u32 s48, s48, s42
            s_lshl_b32 s48, s48, 1
            s_and_b32 s47, s47, 1
            s_add_u32 s48, s48, s47
            s_lshl_b32 s48, s48, 6
            s_add_u32 s48, s48, s46
            v_add_u32 v{7+d}, s48, v2''')
        s(f'''s_mul_i32 s45, s45, 229376
        s_add_u32 s45, s45, {W2S}
        s_mul_i32 s47, s43, 49152
        s_lshl_b32 s48, s44, 11
        s_add_u32 s47, s47, s48
        s_add_u32 s47, s47, s45
        s_lshl_b32 s48, s43, 3
        s_add_u32 s48, s48, s44
        s_lshl_b32 s48, s48, 10
        s_add_u32 s48, s48, s45
        s_add_u32 s48, s48, 196608''')
        base(s, 52, 32, 's47'); base(s, 56, 32, 's48'); s('v_lshlrev_b32 v3, 4, v1')
        for i in range(7): s(f'ds_write_b128 v5, {V(96+4*i,4)} offset:{128*i}')
        s.barrier()
        for i in range(7):
            a, o = (6, 0) if i == 6 else (7 + (i >> 1), 16*928*(i & 1))
            s(f'ds_read_b64_tr_b16 {V(128+4*i,2)}, v{a} offset:{o}'); s(f'ds_read_b64_tr_b16 {V(130+4*i,2)}, v{a} offset:{o+8*928}')
        for i in range(6):
            s(f'global_store_dwordx4 v3, {V(128+4*i,4)}, s[52:53] offset:{1024*(i&1)} sc1')
            if i in (1, 3): base(s, 52, 52, 16384)
        s('global_store_dwordx4 v3, v[152:155], s[56:57] sc1')
    s('s_cmp_ge_u32 s2, 28'); s.cond('s_cbranch_scc1', w2)
    stamp(s, 1); hp(4); pub_flag(s, F1, 4); stamp(s, 2)
    s(f's_mov_b32 s55, {O["npf"] - 4 - O["hp"]}'); s.label('Lpf'); hp(1)
    s('''s_sub_u32 s55, s55, 1
    s_cmp_lg_u32 s55, 0
    s_cbranch_scc1 Lpf''')
    pub_flag(s, F2); stamp(s, 3)
```

```python
import sys
from gen2 import *
NAME = 'sequential_preLN__ssm_conv_s4d__mixer_channel_mlp__prompt'
DBGW = None; ENC = None; NE = 0
def dump_stamps(s):
    if not gen1.STAMP: return
    stamp(s, 15)
    s('s_mov_b32 s48, 0')
    if DBGW is not None:
        def dd(s):
            for i in range(1, 16): s(f's_sub_u32 s42, s{70+2*i}, s70'); s(f'v_mov_b32 v{15+i}, s42')
            s('v_mov_b32 v31, s48'); s('v_mov_b32 v2, 0'); s('s_mov_b64 exec, 1')
            for i in range(4): s(f'global_store_dwordx4 v2, {V(16+4*i,4)}, s[30:31] offset:{16*i}')
            s('s_mov_b64 exec, -1')
            if ENC is not None:
                global NE; NE += 1
                s(f's_sub_u32 s42, s{70+2*ENC}, s70'); s('s_add_u32 s42, s42, 5000'); s.label(f'Lenc{NE}')
                s(f'''s_memrealtime s[44:45]
                s_sub_u32 s44, s44, s70
                s_cmp_lt_u32 s44, s42
                s_cbranch_scc1 Lenc{NE}''')
        s(f'''s_lshl_b32 s42, s2, 3
        s_add_u32 s42, s42, s35
        s_cmp_eq_u32 s42, {DBGW}'''); s.cond('s_cbranch_scc0', dd)
    s('''s_lshl_b32 s42, s2, 3
    s_add_u32 s42, s42, s35
    s_lshl_b32 s42, s42, 6''')
    s(f's_add_u32 s42, s42, {DBG}'); base(s, 46, 32, 's42'); s('v_mov_b32 v2, 0')
    for i in range(16): s(f'v_mov_b32 v{16+i}, s{70+2*i}')
    s('s_mov_b64 exec, 1')
    for i in range(4): s(f'global_store_dwordx4 v2, {V(16+4*i,4)}, s[46:47] offset:{16*i}')
O = dict(na=28, f0=40, f1=130, n6=18, n7=50, n8=28, nb=0, hp=8, cp=0, npf=42)
def tail(s, isB, rest):
    X = 'B' if isB else 'A'
    s.barrier(); stamp(s, 5)
    epilogue2(s); n0 = len(s.vm); s(rest); colsum_pre(s, isB); hg_addr(s); flag_addr(s, 18, F1, J)
    s.wait(vm=len(s.vm) - n0); stamp(s, 6)
    hg_issue(s); colsum(s, isB); mlp_addr(s, isB); hg_check(s); retry(s, 'Lhg' + X, hg_issue, hg_check); flag_wait(s, 18, 'Lf1' + X); stamp(s, 7)
    if not isB:
        def ep(s):
            s('''s_xor_b32 s42, s34, 0x5bd1e995
            s_add_u32 s42, s42, 1
            v_mov_b32 v12, 0
            v_mov_b32 v13, s42
            s_mov_b64 exec, 1
            global_store_dword v12, v13, s[32:33] sc1
            s_mov_b64 exec, -1''')
        s('''s_or_b32 s42, s36, s35
        s_cmp_eq_u32 s42, 0'''); s.cond('s_cbranch_scc0', ep)
    mlp(s, isB, O); dump_stamps(s); s('s_endpgm')
def build():
    p = S(); prologue(p)
    def on(s, w, f, ne=False): s(f's_cmp_eq_u32 s35, {w}'); s.cond('s_cbranch_scc1' if ne else 's_cbranch_scc0', f, (w, ne))
    on(p, 7, st_issue)
    p('''s_cmp_lt_u32 s2, 32
    s_cbranch_scc1 Lhelper''')
    h = p.fork()
    on(p, 7, w1_issue, True)
    stamp(p, 21); xt_addr(p); w1_unit(p); exp_addr(p); stamp(p, 22); mktag(p)
    def pub(s): xt_finish(s); w1_unit2(s)
    def stf(s): s('s_setprio 3'); st_finish(s); s('s_setprio 0'); st_prefill(s)
    on(p, 7, pub, True); on(p, 7, stf); stamp(p, 1)
    p('''s_cmp_ge_u32 s35, 4
    s_cbranch_scc1 LB''')
    a = p.fork(); b = p.fork()
    s = a
    kg_setup(s, False); stamp(s, 24); kg_lo(s, lambda s: 0); stamp(s, 25); kg_mfma(s); w1_flag(s); stamp(s, 26); s.barrier(); stamp(s, 2)
    kg_mfma2(s); s.barrier(); stamp(s, 3)
    expand(s); stamp(s, 27); conv_addr(s); w1_addr(s); epilogue(s); stamp(s, 28); s.barrier(); stamp(s, 4)
    wl = w1_loads(); na = O['na'] + 1
    conv(s, [lambda s: flag_wait(s, 52, 'Lw1A')] + wl[:na], O['f0'], O['f1']); stamp(s, 29); tail(s, False, wl[na:])
    s = b; s.label('LB')
    kg_setup(s, True); stamp(s, 24); kg_hi(s, lambda s: 0); stamp(s, 25); ug_addr(s); stamp(s, 26); s.barrier(); stamp(s, 2)
    ug_issue(s); zero_pads(s); w1_flag(s, 8); w1_addr(s); wl = w1_loads('v43'); nb = O['nb']
    if nb: flag_wait(s, 52, 'Lw1B'); s(wl[:nb + 1])
    s.barrier(); stamp(s, 3)
    expand(s); stamp(s, 27); ug_check(s); retry(s, 'Lug', ug_issue, ug_check)
    stamp(s, 28); ubuild(s); s.barrier(); stamp(s, 4)
    if not nb: flag_wait(s, 52, 'Lw1B')
    flag_hf(s, 46); s(wl[nb + 1:] if nb else wl)
    vbuild(s); epilogue(s); flag_wait(s, 46, 'Lhf'); stamp(s, 29)
    tail(s, True, [])
    h.label('Lhelper'); helper(h, on, O); dump_stamps(h); h('s_endpgm')
    ref = open(f'cdna_kernels/{NAME}.s.ref').read().split('\n')
    hdr = [l for l in ref if l.startswith(';') and '@launch' not in l]
    o = hdr + [f'; @launch grid=(256,1,1) block=(512,1,1) lds={LDS}', '.amdgcn_target "amdgcn-amd-amdhsa--gfx950"', '.text',
        f'.globl {NAME}_kernel', '.p2align 8', f'.type {NAME}_kernel,@function', f'{NAME}_kernel:']
    o += p.out + a.out + b.out + h.out + ['Lend:', '  s_endpgm', '']
    o += ref[ref.index('.section .rodata,"a"'):]
    print('nops', a.nn, b.nn, h.nn, 'lines', len(a.out), len(b.out), len(h.out), file=sys.stderr)
    t = '\n'.join(o)
    import subprocess
    open('_t.s', 'w').write(t.replace('CODESZ', '0x1234'))
    subprocess.check_call('clang -x assembler -target amdgcn-amd-amdhsa -mcpu=gfx950 -c _t.s -o _t.o', shell=True)
    sz = [int(l.split()[2], 16) for l in subprocess.check_output('llvm-objdump -h _t.o', shell=True, text=True).split('\n') if ' .text ' in l][0]
    print('code', sz, file=sys.stderr)
    return t.replace('CODESZ', str(sz - 128))
if __name__ == '__main__':
    gen1.STAMP = 'stamp' in sys.argv
    if 'cyc' in sys.argv: gen1.CLK = 's_memtime'
    for a in sys.argv:
        if a.startswith('dbg='): DBGW = int(a[4:])
        if a.startswith('o:'): k, v = a[2:].split('='); O[k] = int(v)
        if a.startswith('ab='): AB.update(a[3:].split(','))
        if a.startswith('enc='): ENC = int(a[4:])
        if a.startswith('sel='): gen1.SEL[:] = [int(x) for x in a[4:].split(',')]
    open(sys.argv[1], 'w').write(build())
```

```python
from dsl import *
import struct, math
def fb(x): return hex(struct.unpack('<I', struct.pack('<f', x))[0])
def V(a, n): return f'v[{a}:{a+n-1}]'
W1F, F1, STATS, XT, W1S, W2S, HT, PART, DBG = 4096, 32768, 65536, 131072, 0x400000, 0x600000, 0x800000, 0xA00000, 0x2000000
F2 = F1 + 4096
GS, ROW, HI = 30208, 528, 16896
RB, RCH, RCP = 120832, 8320, 4160
UB, UCH = 137472, 4576
YB, VB = 0, 40960
HB, HH = 61440, 28736
GB, OB, SB = 0, 32768, 50176
LDS = 146688
SPIN = 20000
LOG2E = 1.4426950408889634
TAG = 's34'; W = 's35'; C = 's37'; TILE = 's38'; J = 's39'
def base(s, d, src, off):
    s(f's_add_u32 s{d}, s{src}, {off}'); s(f's_addc_u32 s{d+1}, s{src+1}, 0')
O = {}
STAMP = False
CLK = 's_memrealtime'
SEL = list(range(16))
def stamp(s, n):
    if STAMP and n in SEL:
        n = SEL.index(n); s(f'{CLK} s[{70+2*n}:{71+2*n}]')
def prologue(s):
    s('''s_load_dwordx16 s[4:19], s[0:1], 0
    s_load_dwordx2 s[32:33], s[0:1], 112
    s_load_dwordx8 s[20:27], s[0:1], 64
    s_load_dwordx4 s[28:31], s[0:1], 96
    s_getpc_b64 s[68:69]
    s_cmp_ge_u32 s2, 256
    s_cbranch_scc1 Lend''')
    stamp(s, 0)
    s('''v_lshrrev_b32 v11, 6, v0
    v_and_b32 v1, 63, v0
    v_readfirstlane_b32 s35, v11
    s_sub_u32 s36, s2, 32
    s_cselect_b32 s42, 0, s36
    s_lshr_b32 s43, s42, 3
    s_and_b32 s42, s42, 7
    s_mul_i32 s37, s42, 28
    s_add_u32 s37, s37, s43
    s_and_b32 s38, s42, 1
    s_mul_i32 s38, s38, 28
    s_add_u32 s43, s43, s38
    s_lshr_b32 s39, s43, 3
    s_and_b32 s43, s43, 7
    s_and_b32 s42, s42, 6
    s_lshl_b32 s42, s42, 2
    s_add_u32 s38, s42, s43
    s_lshl_b32 s42, s37, 10
    v_and_b32 v28, 255, v0
    v_lshl_add_u32 v28, v28, 2, s42
    s_lshl_b32 s49, s37, 2
    s_mul_i32 s3, s2, 7168
    s_cmp_eq_u32 s35, 7
    s_cselect_b32 s42, 0, s35
    s_lshl_b32 s42, s42, 7
    s_add_u32 s46, s42, s3
    v_lshrrev_b32 v15, 3, v1
    v_and_b32 v14, 7, v1
    v_mul_u32_u24 v12, 896, v15
    v_lshl_add_u32 v12, v14, 4, v12
    v_and_b32 v11, 3, v0
    v_lshrrev_b32 v16, 2, v0
    v_mul_u32_u24 v18, 3584, v16
    v_lshl_add_u32 v18, v11, 4, v18
    s_lshr_b32 s50, s37, 3
    s_lshl_b32 s50, s50, 1
    s_and_b32 s42, s37, 1
    s_add_u32 s50, s50, s42
    s_bfe_u32 s51, s37, 0x20001
    s_mul_i32 s48, s51, 401408
    s_lshl_b32 s43, s50, 6
    s_add_u32 s48, s48, s43
    v_lshlrev_b32 v13, 4, v0''')
    s.wait(lg=0); stamp(s, 39)
    base(s, 44, 4, 's46')
    if O.get('xo'):
        s("""global_load_dwordx4 v[64:67], v12, s[44:45]
        s_load_dword s34, s[32:33], 0
        s_load_dword s40, s[14:15], s49
        global_load_dword v29, v28, s[6:7]
        global_load_dword v30, v28, s[8:9]""")
    else:
        s("""global_load_dword v29, v28, s[6:7]
        global_load_dword v30, v28, s[8:9]
        s_load_dword s40, s[14:15], s49
        s_load_dword s34, s[32:33], 0
        global_load_dwordx4 v[64:67], v12, s[44:45]""")
    s("""global_load_dword v31, v28, s[10:11]
    global_load_dword v32, v28, s[12:13]
    s_load_dword s41, s[16:17], s49""")
def pretouch(s):
    s("""v_min_u32 v11, 4, v1
    v_lshlrev_b32 v11, 21, v11
    v_add_u32 v11, 0x1f0000, v11
    v_cmp_eq_u32 vcc, 0, v1
    v_mov_b32 v16, 0xc000
    v_cndmask_b32 v11, v11, v16, vcc
    global_load_dword v254, v11, s[32:33]""")
def code_prefetch(s):
    s('''v_lshlrev_b32 v11, 7, v0
    v_min_u32 v11, CODESZ, v11
    global_load_dword v255, v11, s[68:69]''')
def mktag(s): s('s_xor_b32 s34, s34, 0x5bd1e995')
XS = RB + 8192
def xt_addr(s):
    s('s_lshl_b32 s42, s3, 1'); s(f's_add_u32 s42, s42, {XT+3584}'); base(s, 46, 32, 's42')
    s(f'''s_mul_i32 s42, s35, 1280
    s_add_u32 s42, s42, {XS}
    v_mul_u32_u24 v15, 160, v15
    v_lshl_add_u32 v14, v14, 4, v15
    v_add_u32 v14, s42, v14
    v_and_b32 v15, 3, v1
    v_mul_u32_u24 v15, 320, v15
    v_lshrrev_b32 v16, 2, v1
    v_lshl_add_u32 v15, v16, 3, v15
    v_add_u32 v15, s42, v15''')
def xt_finish(s):
    s('''ds_write_b128 v14, v[64:67]
    ds_read_b32 v20, v15
    ds_read_b32 v22, v15 offset:160
    ds_read_b32 v24, v15 offset:4
    ds_read_b32 v26, v15 offset:164
    v_mov_b32 v21, s34
    v_mov_b32 v23, s34
    v_mov_b32 v25, s34
    v_mov_b32 v27, s34
    global_store_dwordx4 v13, v[20:23], s[46:47] offset:-3584 sc1
    global_store_dwordx4 v13, v[24:27], s[46:47] offset:3584 sc1''')
def st_issue(s):
    for i in range(1, 7): s(f'global_load_dwordx4 {V(64+4*i,4)}, v12, s[44:45] offset:{128*i}')
def st_prefill(s):
    s('s_lshl_b32 s42, s37, 13'); s(f's_add_u32 s42, s42, {HT+4096}'); base(s, 52, 32, 's42')
    s('v_lshlrev_b32 v17, 4, v1'); s([f'v_mov_b32 v{20+i}, -1' for i in range(4)])
    for i in range(8): s(f'global_store_dwordx4 v17, v[20:23], s[52:53] offset:{1024*i-4096} sc1')
def bf16r(s, d, a):
    s(f'v_cvt_pk_bf16_f32 {d}, {a}, {a}'); s(f'v_and_b32 {d}, 0xffff0000, {d}')
def st_finish(s):
    s('''v_mov_b32 v14, 0x3f803f80
    v_mov_b32 v16, 0
    v_mov_b32 v17, 0
    v_mov_b32 v18, 0
    v_mov_b32 v19, 0''')
    for i in range(28):
        s(f'v_dot2c_f32_bf16 v{16+(i&1)}, v{64+i}, v14'); s(f'v_dot2c_f32_bf16 v{18+(i&1)}, v{64+i}, v{64+i}')
    s('''v_add_f32 v16, v16, v17
    v_add_f32 v18, v18, v19''')
    for d in ('quad_perm:[1,0,3,2]', 'quad_perm:[2,3,0,1]', 'row_half_mirror'):
        s(f'v_add_f32_dpp v16, v16, v16 {d} row_mask:0xf bank_mask:0xf')
        s(f'v_add_f32_dpp v18, v18, v18 {d} row_mask:0xf bank_mask:0xf')
    s(f'''v_mul_f32 v16, {fb(1/448)}, v16
    v_mul_f32 v18, {fb(1/448)}, v18
    v_fma_f32 v18, -v16, v16, v18
    v_max_f32 v18, 0, v18''')
    bf16r(s, 'v18', 'v18'); s(f'v_add_f32 v18, {fb(1e-5)}, v18'); bf16r(s, 'v18', 'v18')
    s('''v_sqrt_f32 v18, v18
    v_mov_b32 v15, s34
    v_cvt_pk_bf16_f32 v14, v16, v18
    v_and_b32 v11, 7, v1
    v_cmp_eq_u32 vcc, 0, v11
    s_lshl_b32 s42, s2, 6''')
    s(f's_add_u32 s42, s42, {STATS}'); base(s, 46, 32, 's42')
    s('''s_and_saveexec_b64 s[48:49], vcc
    global_store_dwordx2 v1, v[14:15], s[46:47] sc1
    s_mov_b64 exec, s[48:49]''')
def tr_addr(s, d, t):
    s(f'''v_lshrrev_b32 {d}, 5, v1
    v_bfe_u32 {t}, v1, 2, 2
    v_lshl_add_u32 {d}, {d}, 3, {t}
    v_bfe_u32 {t}, v1, 4, 1
    v_lshlrev_b32 {d}, 6, {d}
    v_lshl_add_u32 {d}, {t}, 5, {d}
    v_and_b32 {t}, 3, v1
    v_lshl_add_u32 {d}, {t}, 3, {d}''')
def w1_issue(s):
    base(s, 52, 20, 's48'); s('global_load_dwordx4 v[92:95], v18, s[52:53]')
def w1_unit(s):
    s(f'v_add_u32 v19, {RB}, v13')
    tr_addr(s, 'v33', 'v11')
    s(f'''s_lshl_b32 s42, s35, 10
    s_add_u32 s42, s42, {RB}
    v_add_u32 v33, s42, v33
    s_mul_i32 s42, s50, 28
    s_mul_i32 s43, s51, 7
    s_add_u32 s42, s42, s43
    s_lshl_b32 s42, s42, 10
    s_add_u32 s42, s42, {W1S}'''); base(s, 52, 32, 's42')
def w1_unit2(s):
    s('''ds_write_b128 v19, v[92:95]
    ds_read_b64_tr_b16 v[96:97], v33
    ds_read_b64_tr_b16 v[98:99], v33 offset:256
    global_store_dwordx4 v13, v[96:99], s[52:53] sc1''')
def w1_flag(s, vm=0):
    s('''s_lshl_b32 s42, s50, 2
    s_add_u32 s42, s42, s51
    s_lshl_b32 s42, s42, 5
    s_add_u32 s42, s42, s35
    s_lshl_b32 s42, s42, 2''')
    s(f's_add_u32 s42, s42, {W1F}'); base(s, 52, 32, 's42')
    s('''v_mov_b32 v18, 0
    v_mov_b32 v19, s34''')
    s.wait(vm=vm)
    s('''s_mov_b64 exec, 1
    global_store_dword v18, v19, s[52:53] sc1
    s_mov_b64 exec, -1''')
def exp_addr(s):
    s(f'''v_and_b32 v11, 255, v0
    v_lshlrev_b32 v11, 3, v11
    v_sub_u32 v11, 2047, v11
    v_cvt_f32_u32 v11, v11
    s_lshr_b32 s42, s35, 2
    s_mul_i32 s42, s42, {2*GS}''')
    for e in range(9): s(f'v_add_f32 v{34+e}, {fb(-e)}, v11')
    s('v_max_f32 v42, 0, v42')
    for e in range(0, 9, 2): s(f'v_cvt_pk_bf16_f32 v{34+e}, v{34+e}, v{34+min(e+1,8)}')
    for e in range(0, 9, 2):
        if e < 8: s(f'v_and_b32 v{35+e}, 0xffff0000, v{34+e}')
        s(f'v_lshlrev_b32 v{34+e}, 16, v{34+e}')
    for e in range(9): s(f'v_cvt_u32_f32 v{34+e}, v{34+e}')
    for e in range(9):
        p = f'v{34+e}'; d = f'v{2+e}'
        s(f'''v_lshrrev_b32 {d}, 8, {p}
        v_and_b32 v11, 7, {p}
        v_lshl_add_u32 {d}, {d}, 3, v11
        v_bfe_u32 v11, {p}, 3, 5
        v_lshl_add_u32 {d}, {d}, 5, v11
        v_lshl_add_u32 {d}, {d}, 2, s42''')
def kg_setup(s, isB):
    lo = LOG2E - struct.unpack('<f', struct.pack('<f', LOG2E))[0]
    s(f'''s_and_b32 s42, s35, 2
    s_lshl_b32 s42, s42, 3
    s_lshr_b32 s43, s40, s42
    s_lshl_b32 s43, s43, 16
    s_mov_b32 s48, {fb(LOG2E)}
    v_mov_b32 v39, s43
    v_mul_f32 v38, s48, v39
    v_fma_f32 v40, s48, v39, -v38
    v_fmac_f32 v40, {fb(lo)}, v39
    v_exp_f32 v38, v38
    v_mul_f32 v40, {fb(math.log(2))}, v40
    v_fmac_f32 v38, v38, v40''')
    bf16r(s, 'v38', 'v38')
    s(f'''s_and_b32 s42, s35, 3
    s_mul_i32 s42, s42, {GS}
    s_add_u32 s54, s42, {HI if isB else 0}
    v_lshl_add_u32 v33, v1, 3, s54
    v_lshlrev_b32 v34, 16, v29
    v_and_b32 v35, 0xffff0000, v29
    v_mul_f32 v34, s48, v34
    v_mul_f32 v35, s48, v35
    v_exp_f32 v34, v34
    v_exp_f32 v35, v35
    v_lshlrev_b32 v36, 16, v30
    v_and_b32 v37, 0xffff0000, v30
    v_cvt_pk_bf16_f32 v35, v34, v35
    v_mul_f32 v36, v38, v36
    v_mul_f32 v37, v38, v37
    v_lshlrev_b32 v34, 16, v35
    v_and_b32 v35, 0xffff0000, v35
    v_mul_f32 v34, v38, v34
    v_mul_f32 v35, v38, v35
    v_mul_f32 v36, {fb((-1 if isB else 1)/(2*math.pi))}, v36
    v_mul_f32 v37, {fb((-1 if isB else 1)/(2*math.pi))}, v37
    v_mul_f32 v34, {fb(-LOG2E)}, v34
    v_mul_f32 v35, {fb(-LOG2E)}, v35''')
def cpow(s, d, p):
    s(f'''v_mul_f32 v60, {fb(p)}, v34
    v_mul_f32 v61, {fb(p)}, v35
    v_mul_f32 v62, {fb(p)}, v36
    v_mul_f32 v63, {fb(p)}, v37
    v_exp_f32 v60, v60
    v_exp_f32 v61, v61
    v_fract_f32 v62, v62
    v_fract_f32 v63, v63
    v_cos_f32 v{d}, v62
    v_cos_f32 v{d+1}, v63
    v_sin_f32 v{d+2}, v62
    v_sin_f32 v{d+3}, v63
    v_pk_mul_f32 {V(d,2)}, {V(d,2)}, v[60:61]
    v_pk_mul_f32 {V(d+2,2)}, {V(d+2,2)}, v[60:61]''')
def cmul(d, a, m, t):
    return [f'v_pk_mul_f32 {V(t,2)}, {V(a,2)}, {V(m,2)}', f'v_pk_mul_f32 {V(t+2,2)}, {V(a,2)}, {V(m+2,2)}',
            f'v_pk_fma_f32 {V(d,2)}, {V(a+2,2)}, {V(m+2,2)}, {V(t,2)} neg_lo:[1,0,0] neg_hi:[1,0,0]',
            f'v_pk_fma_f32 {V(d+2,2)}, {V(a+2,2)}, {V(m,2)}, {V(t+2,2)}']
cw = [0, 0]
def crow(a, row, k=0):
    c = 128 + 6 * k + 2 * (cw[k] % 3); cw[k] += 1
    return [f'v_cvt_pk_bf16_f32 v{c}, v{a}, v{a+1}', f'v_cvt_pk_bf16_f32 v{c+1}, v{a+2}, v{a+3}', f'ds_write_b64 v33, {V(c,2)} offset:{row*ROW}']
def zipl(a, b):
    o = []
    for i in range(max(len(a), len(b))): o += a[i:i+1] + b[i:i+1]
    return o
def kg_lo(s, mid, fill=[]):
    cpow(s, 40, 8); cpow(s, 48, 128)
    s('''v_mov_b32 v128, 0x3f803f80
    v_mov_b32 v129, 0
    ds_write_b64 v33, v[128:129]'''); cw[0] = 1
    a = crow(40, 1) + cmul(44, 40, 40, 52) + crow(44, 2); b = crow(48, 16, 1)
    for j in range(3, 16): a += cmul(44, 44, 40, 52) + crow(44, j)
    for j in range(17, 32): b += cmul(48, 48, 40, 56) + crow(48, j, 1)
    o = weave(zipl(a, b), fill, 0, 100); n = len(o) * 2 // 3; s(o[:n]); mid(s); s(o[n:])
HROW = {256:8, 258:9, 512:10, 768:11, 260:12, 262:13, 516:14, 772:15, 1024:16, 1280:17, 1536:18, 1792:19, 2048:24}
def kg_hi(s, mid, fill=[]):
    cpow(s, 40, 1); cpow(s, 44, 256)
    s('''v_add_f32 v38, v38, v38
    v_lshlrev_b32 v48, 16, v31
    v_and_b32 v49, 0xffff0000, v31
    v_lshlrev_b32 v50, 16, v32
    v_and_b32 v51, 0xffff0000, v32
    v_mul_f32 v48, v38, v48
    v_mul_f32 v49, v38, v49
    v_mul_f32 v50, -v38, v50
    v_mul_f32 v51, -v38, v51''')
    s(cmul(52, 48, 44, 60))
    a = crow(48, 0); b = crow(52, 8, 1)
    for p in range(1, 8):
        a += cmul(48, 48, 40, 56) + crow(48, p)
        if p in (2, 6): a += cmul(124, 48, 44, 56) + crow(124, HROW[256+p])
        if p == 4: a += cmul(140, 48, 44, 56) + crow(140, 12)
    for p in range(512, 2049, 256): b += cmul(52, 52, 44, 60) + crow(52, HROW[p], 1)
    b += cmul(140, 140, 44, 60) + crow(140, 14, 1) + cmul(140, 140, 44, 60) + crow(140, 15, 1)
    o = weave(zipl(a, b), fill, 0, 60); n = len(o) // 2; s(o[:n]); mid(s); s(o[n:])
def kg_mfma(s):
    s(f'''v_and_b32 v11, 31, v1
    v_lshrrev_b32 v12, 5, v1
    v_mul_u32_u24 v13, {ROW}, v11
    v_lshl_add_u32 v13, v12, 4, v13
    v_add_u32 v13, s54, v13
    v_lshlrev_b32 v12, 9, v12
    v_lshl_add_u32 v12, v11, 2, v12
    v_add_u32 v12, s54, v12''')
def kg_mfma2(s):
    rd = lambda k: [f'ds_read_b128 {V(80+8*(k%6),4)}, v13 offset:{HI+32*k}', f'ds_read_b128 {V(84+8*(k%6),4)}, v13 offset:{32*k}']
    for k in range(5): s(rd(k))
    for k in range(16):
        if k + 5 < 16: s(rd(k + 5))
        s(f'v_mfma_f32_32x32x16_bf16 v[64:79], {V(80+8*(k%6),4)}, {V(84+8*(k%6),4)}, {"0" if k==0 else "v[64:79]"}')
    for r, p in enumerate([0,1,2,3,256,258,512,768,1024,1280,1536,1792,2048]):
        s(f'ds_write_b32 v12, v{64+r} offset:{((p>>8)*8+(p&7))*128}')
def expand(s):
    for e in range(9): s(f'ds_read2st64_b32 {V(12+2*e,2)}, v{2+e} offset0:0 offset1:{GS//256}')
    s(f'''v_and_b32 v11, 255, v0
    s_lshr_b32 s42, s35, 2
    s_mul_i32 s42, s42, {RCH}
    s_add_u32 s42, s42, {RB}
    v_cmp_ne_u32 vcc, 255, v11
    v_lshl_add_u32 v11, v11, 4, s42''')
    for e in range(9): s(f'v_add_f32 v{12+2*e}, v{12+2*e}, v{13+2*e}')
    s('v_cndmask_b32 v28, 0, v28, vcc')
    for i in range(4): s(f'v_cvt_pk_bf16_f32 v{4+i}, v{12+4*i}, v{14+4*i}')
    s('ds_write_b128 v11, v[4:7]')
    for i in range(4): s(f'v_cvt_pk_bf16_f32 v{32+i}, v{14+4*i}, v{16+4*i}')
    s(f'ds_write_b128 v11, v[32:35] offset:{RCP}')
def zero_pads(s):
    s(f'''s_mul_i32 s42, s35, {RCP}
    s_add_u32 s42, s42, {RB+4096-4*RCP}
    v_and_b32 v11, 7, v1
    v_lshl_add_u32 v11, v11, 2, s42
    v_mov_b32 v14, 0
    v_mov_b32 v15, 0
    ds_write_b32 v11, v14
    s_and_b32 s42, s35, 1
    s_mul_i32 s42, s42, {UCH}
    s_add_u32 s42, s42, {UB}
    v_min_u32 v11, 59, v1
    v_lshl_add_u32 v11, v11, 3, s42
    ds_write_b64 v11, v[14:15]''')
def spin_begin(s, l):
    s(f's_mov_b32 s55, {SPIN}'); s.label(l)
def spin_end(s, l):
    s(f'''s_cbranch_vccz {l}x
    s_sub_u32 s55, s55, 1
    s_cmp_lg_u32 s55, 0
    s_cbranch_scc1 {l}'''); s.label(l + 'x')
def ug_addr(s):
    s(f'''v_and_b32 v36, 255, v0
    v_lshrrev_b32 v37, 2, v36
    v_and_b32 v38, 3, v36
    v_mul_u32_u24 v37, 14336, v37
    v_lshl_add_u32 v37, v38, 4, v37
    v_lshlrev_b32 v38, 4, v36
    s_and_b32 s42, s37, 1
    s_mul_i32 s42, s42, 7168
    s_lshr_b32 s43, s37, 1
    s_lshl_b32 s43, s43, 6
    s_add_u32 s42, s42, s43
    s_add_u32 s42, s42, {XT}''')
    base(s, 56, 32, 's42')
    for i in range(1, 4): base(s, 56 + 2*i, 54 + 2*i, 64*14336)
    base(s, 64, 32, STATS + 4096); base(s, 66, 32, STATS + 12288)
def ug_issue(s):
    for i in range(4):
        s(f'global_load_dwordx4 {V(64+4*i,4)}, v38, s[{64+2*(i>>1)}:{65+2*(i>>1)}] offset:{-4096 if i%2==0 else 0} sc1')
        s(f'global_load_dwordx4 {V(80+4*i,4)}, v37, s[{56+2*i}:{57+2*i}] sc1')
def ug_check(s):
    s('v_min_u32 v39, v65, v67'); s('v_max_u32 v40, v65, v67')
    for i in [4,1,5,2,6,3,7]:
        s(f'v_min3_u32 v39, v39, v{65+4*i}, v{67+4*i}'); s(f'v_max3_u32 v40, v40, v{65+4*i}, v{67+4*i}')
    s('''v_xor_b32 v39, s34, v39
    v_xor_b32 v40, s34, v40
    v_or_b32 v39, v39, v40
    v_cmp_ne_u32 vcc, 0, v39''')
def ubuild(s):
    s(f'v_lshlrev_b32 v36, 2, v36'); s(f'v_add_u32 v39, {UB+480}, v36')
    for t in range(8):
        ms = 64 + 2*t; x = 80 + 2*t
        s(f'''v_and_b32 v{ms+1}, 0xffff0000, v{ms}
        v_lshlrev_b32 v{ms}, 16, v{ms}
        v_rcp_f32 v{ms+1}, v{ms+1}
        v_lshlrev_b32 v{96+2*t}, 16, v{x}
        v_and_b32 v{97+2*t}, 0xffff0000, v{x}
        v_pk_add_f32 {V(112+2*t,2)}, {V(96+2*t,2)}, {V(ms,2)} op_sel_hi:[1,0] neg_lo:[0,1] neg_hi:[0,1]
        v_pk_mul_f32 {V(112+2*t,2)}, {V(112+2*t,2)}, {V(ms,2)} op_sel:[0,1]''')
        if t & 1:
            i = t >> 1
            s(f'''v_cvt_pk_bf16_f32 v{48+2*i}, v{110+2*t}, v{112+2*t}
            v_cvt_pk_bf16_f32 v{49+2*i}, v{111+2*t}, v{113+2*t}
            ds_write_b32 v39, v{48+2*i} offset:{1024*i}
            ds_write_b32 v39, v{49+2*i} offset:{1024*i+UCH}''')
def vbuild(s):
    s(f'''s_lshl_b32 s42, s41, 16
    s_and_b32 s43, s41, 0xffff0000
    v_and_b32 v36, 255, v0
    v_lshrrev_b32 v37, 7, v36
    v_mul_u32_u24 v37, 1280, v37
    v_bfe_u32 v38, v36, 1, 2
    v_mul_u32_u24 v38, 320, v38
    v_add_u32 v37, v37, v38
    v_bfe_u32 v38, v36, 3, 4
    v_lshl_add_u32 v37, v38, 4, v37
    v_and_b32 v38, 1, v36
    v_lshl_add_u32 v37, v38, 3, v37''')
    for i in range(4):
        for ch in range(2):
            d = 64 + 4*i + 2*ch
            s(f'''v_fma_f32 v{d}, v{112+4*i+ch}, s{42+ch}, v{96+4*i+ch}
            v_fma_f32 v{d+1}, v{114+4*i+ch}, s{42+ch}, v{98+4*i+ch}
            ds_write_b64 v37, {V(d,2)} offset:{VB+10240*ch+2560*i}''')
def conv_addr(s):
    s(f'''v_and_b32 v11, 15, v1
    v_lshrrev_b32 v12, 4, v1
    s_lshr_b32 s42, s35, 1
    s_and_b32 s43, s35, 1
    s_mul_i32 s48, s42, {RCH}
    s_lshl_b32 s49, s43, 8
    s_sub_u32 s48, s48, s49
    s_add_u32 s48, s48, {RB + 2*(2031 - 32*(8+3)) }
    v_lshlrev_b32 v13, 3, v12
    v_sub_u32 v13, v13, v11
    v_and_b32 v14, 1, v11
    v_mul_u32_u24 v14, {RCP-2}, v14
    v_lshl_add_u32 v13, v13, 1, s48
    v_add_u32 v13, {RCP-2}, v13
    v_sub_u32 v2, v13, v14
    v_subrev_u32 v3, 1024, v2
    v_subrev_u32 v4, 2048, v2
    v_subrev_u32 v5, 3072, v2
    s_mul_i32 s48, s42, {UCH}
    s_sub_u32 s48, s48, s49
    s_add_u32 s48, s48, {UB + 448 - 192}
    v_lshlrev_b32 v6, 5, v11
    v_lshl_add_u32 v6, v12, 4, v6
    v_add_u32 v6, s48, v6
    s_mul_i32 s48, s35, 10240
    v_mul_u32_u24 v7, 320, v12
    v_lshl_add_u32 v7, v11, 4, v7
    v_add_u32 v7, s48, v7''')
def conv(s, fill, f0, f1):
    NA, NB = 5, 10
    mf = [(r, sg, mu) for r in range(4) for sg in range(8) for mu in range(8 - sg)]
    last = {}
    for n, (r, sg, mu) in enumerate(mf): last[('A', r, sg)] = n; last[('B', r, mu)] = n
    order = []
    for (r, sg, mu) in mf:
        for k in (('A', r, sg), ('B', r, mu)):
            if k not in order: order.append(k)
    qa = [k for k in order if k[0] == 'A']; qb = [k for k in order if k[0] == 'B']
    fa = [16 + 4*i for i in range(NA)]; fbb = [96 + 4*i for i in range(NB)]; slot = {}
    def ld(k):
        if k[0] == 'A':
            d = slot[k] = fa.pop(0); o = 128*(1 - (k[2] & 1)) + 16*(3 - k[1]); a = 2 + (k[2] >> 1)
            return [f'ds_read2_b32 {V(d,2)}, v{a} offset0:{o} offset1:{o+1}', f'ds_read2_b32 {V(d+2,2)}, v{a} offset0:{o+2} offset1:{o+3}']
        d = slot[k] = fbb.pop(0)
        return [f'ds_read_b128 {V(d,4)}, v6 offset:{512*k[2] + 64*(3-k[1])}']
    s(ld(qa.pop(0)))
    for i in range(8): s(ld(qb.pop(0)))
    items = []; seen = set()
    for n, (r, sg, mu) in enumerate(mf):
        R = sg + mu; acc = V(64 + 4*R, 4)
        it = [f'v_mfma_f32_16x16x32_bf16 {acc}, {V(slot[("A",r,sg)],4)}, {V(slot[("B",r,mu)],4)}, {acc if R in seen else 0}']
        seen.add(R)
        if last[('A', r, sg)] == n: fa.append(slot[('A', r, sg)])
        if last[('B', r, mu)] == n: fbb.append(slot[('B', r, mu)])
        if qa and fa: it += ld(qa.pop(0))
        if qb and fbb: it += ld(qb.pop(0))
        items.append(it)
    yw = lambda R: f'ds_write_b128 v7, {V(64+4*R,4)} offset:{YB+1280*R}'
    for R in range(5): items[mf.index((3, R, 0)) + 6].append(yw(R))
    s(weave(items, fill, f0, f1))
    for R in range(5, 8): s(yw(R))
def epilogue(s):
    s(f'''v_and_b32 v36, 255, v0
    v_lshrrev_b32 v37, 5, v36
    v_mul_u32_u24 v37, 1280, v37
    v_and_b32 v38, 1, v36
    v_mul_u32_u24 v38, 640, v38
    v_add_u32 v37, v37, v38
    v_bfe_u32 v38, v36, 1, 4
    v_lshl_add_u32 v37, v38, 4, v37
    s_lshr_b32 s42, s35, 2
    s_mul_i32 s43, s42, 10240
    v_add_u32 v38, s43, v37
    v_add_u32 v37, s43, v38
    v_lshlrev_b32 v36, 4, v0
    s_lshl_b32 s42, s37, 13
    s_add_u32 s42, s42, {HT}''')
    base(s, 18, 32, 's42')
def epilogue2(s):
    for h in range(2):
        s(f'''ds_read_b128 {V(16+4*h,4)}, v38 offset:{VB+320*h}
        ds_read_b128 {V(24+4*h,4)}, v37 offset:{YB+320*h}
        ds_read_b128 {V(48+4*h,4)}, v37 offset:{YB+10240+320*h}''')
    for i in range(4):
        s(f'''v_pk_add_f32 {V(24+2*i,2)}, {V(24+2*i,2)}, {V(48+2*i,2)}
        v_pk_add_f32 {V(16+2*i,2)}, {V(16+2*i,2)}, {V(24+2*i,2)}
        v_cvt_pk_bf16_f32 v{40+i}, v{16+2*i}, v{17+2*i}''')
    s('global_store_dwordx4 v36, v[40:43], s[18:19] sc1')
```

```python
import sys
from gen2 import *
NAME = 'sequential_preLN__ssm_conv_s4d__mixer_channel_mlp__prompt'
DBGW = None; ENC = None; NE = 0
def dump_stamps(s):
    if not gen1.STAMP: return
    stamp(s, 15)
    s('s_mov_b32 s48, 0')
    if DBGW is not None:
        def dd(s):
            for i in range(1, 16): s(f's_sub_u32 s42, s{70+2*i}, s70'); s(f'v_mov_b32 v{15+i}, s42')
            s('v_mov_b32 v31, s48'); s('v_mov_b32 v2, 0'); s('s_mov_b64 exec, 1')
            for i in range(4): s(f'global_store_dwordx4 v2, {V(16+4*i,4)}, s[30:31] offset:{16*i}')
            s('s_mov_b64 exec, -1')
            if ENC is not None:
                global NE; NE += 1
                s(f's_sub_u32 s42, s{70+2*ENC}, s70'); s('s_add_u32 s42, s42, 5000'); s.label(f'Lenc{NE}')
                s(f'''s_memrealtime s[44:45]
                s_sub_u32 s44, s44, s70
                s_cmp_lt_u32 s44, s42
                s_cbranch_scc1 Lenc{NE}''')
        s(f'''s_lshl_b32 s42, s2, 3
        s_add_u32 s42, s42, s35
        s_cmp_eq_u32 s42, {DBGW}'''); s.cond('s_cbranch_scc0', dd)
    s('''s_lshl_b32 s42, s2, 3
    s_add_u32 s42, s42, s35
    s_lshl_b32 s42, s42, 6''')
    s(f's_add_u32 s42, s42, {DBG}'); base(s, 46, 32, 's42'); s('v_mov_b32 v2, 0')
    for i in range(16): s(f'v_mov_b32 v{16+i}, s{70+2*i}')
    s('s_mov_b64 exec, 1')
    for i in range(4): s(f'global_store_dwordx4 v2, {V(16+4*i,4)}, s[46:47] offset:{16*i}')
O.update(ug=0, na=28, f0=40, f1=130, n6=18, n7=50, n8=28, nb=0, hp=8, cp=0, npf=42)
def tail(s, isB, rest):
    X = 'B' if isB else 'A'
    s.barrier(); stamp(s, 5)
    epilogue2(s); n0 = len(s.vm); s(rest); colsum_pre(s, isB); hg_addr(s); flag_addr(s, 18, F1, J)
    s.wait(vm=len(s.vm) - n0); stamp(s, 6)
    hg_issue(s); colsum(s, isB); mlp_addr(s, isB); hg_check(s); retry(s, 'Lhg' + X, hg_issue, hg_check); flag_wait(s, 18, 'Lf1' + X); stamp(s, 7)
    if not isB:
        def ep(s):
            s('''s_xor_b32 s42, s34, 0x5bd1e995
            s_add_u32 s42, s42, 1
            v_mov_b32 v12, 0
            v_mov_b32 v13, s42
            s_mov_b64 exec, 1
            global_store_dword v12, v13, s[32:33] sc1
            s_mov_b64 exec, -1''')
        s('''s_or_b32 s42, s36, s35
        s_cmp_eq_u32 s42, 0'''); s.cond('s_cbranch_scc0', ep)
    mlp(s, isB, O); dump_stamps(s); s('s_endpgm')
def build():
    p = S(); prologue(p)
    def on(s, w, f, ne=False): s(f's_cmp_eq_u32 s35, {w}'); s.cond('s_cbranch_scc1' if ne else 's_cbranch_scc0', f, (w, ne))
    on(p, 7, st_issue)
    if O.get('pt'): on(p, 6, pretouch)
    p('''s_cmp_lt_u32 s2, 32
    s_cbranch_scc1 Lhelper''')
    h = p.fork()
    on(p, 7, w1_issue, True)
    if O.get('early'):
        for n in range(5, -1, -1): p(f's_waitcnt vmcnt({n})'); stamp(p, 46 - n)
        p.wait(lg=0); stamp(p, 47)
    stamp(p, 21); xt_addr(p); w1_unit(p); exp_addr(p); stamp(p, 22); mktag(p)
    def pub(s): xt_finish(s); w1_unit2(s)
    def stf(s): s('s_setprio 3'); st_finish(s); s('s_setprio 0'); st_prefill(s)
    on(p, 7, pub, True); on(p, 7, stf); stamp(p, 1)
    if O.get('early'):
        for n in range(2, -1, -1): p(f's_waitcnt vmcnt({n})'); stamp(p, 50 - n)
    p('''s_cmp_ge_u32 s35, 4
    s_cbranch_scc1 LB''')
    a = p.fork(); b = p.fork()
    s = a
    kg_setup(s, False); stamp(s, 24); kg_lo(s, lambda s: 0); stamp(s, 25); kg_mfma(s); w1_flag(s); stamp(s, 26); s.barrier(); stamp(s, 2)
    kg_mfma2(s); s.barrier(); stamp(s, 3)
    expand(s); stamp(s, 27); conv_addr(s); w1_addr(s); epilogue(s); stamp(s, 28); s.barrier(); stamp(s, 4)
    wl = w1_loads(); na = O['na'] + 1
    conv(s, [lambda s: flag_wait(s, 52, 'Lw1A')] + wl[:na], O['f0'], O['f1']); stamp(s, 29); tail(s, False, wl[na:])
    s = b; s.label('LB')
    kg_setup(s, True); stamp(s, 24); kg_hi(s, lambda s: 0); stamp(s, 25); ug_addr(s); stamp(s, 26); s.barrier(); stamp(s, 2)
    if O['ug'] == 0: ug_issue(s)
    zero_pads(s); w1_flag(s, 8 if O['ug'] == 0 else 0); w1_addr(s); wl = w1_loads('v43'); nb = O['nb']
    if nb: flag_wait(s, 52, 'Lw1B'); s(wl[:nb + 1])
    s.barrier(); stamp(s, 3)
    if O['ug'] == 1: ug_issue(s)
    expand(s); stamp(s, 27)
    if O['ug'] == 2: ug_issue(s)
    ug_check(s); retry(s, 'Lug', ug_issue, ug_check)
    stamp(s, 28); ubuild(s); s.barrier(); stamp(s, 4)
    if not nb: flag_wait(s, 52, 'Lw1B')
    flag_hf(s, 46); s(wl[nb + 1:] if nb else wl)
    vbuild(s); epilogue(s); flag_wait(s, 46, 'Lhf'); stamp(s, 29)
    tail(s, True, [])
    h.label('Lhelper'); helper(h, on, O); dump_stamps(h); h('s_endpgm')
    ref = open(f'cdna_kernels/{NAME}.s.ref').read().split('\n')
    hdr = [l for l in ref if l.startswith(';') and '@launch' not in l]
    o = hdr + [f'; @launch grid=(256,1,1) block=(512,1,1) lds={LDS}', '.amdgcn_target "amdgcn-amd-amdhsa--gfx950"', '.text',
        f'.globl {NAME}_kernel', '.p2align 8', f'.type {NAME}_kernel,@function', f'{NAME}_kernel:']
    o += p.out + a.out + b.out + h.out + ['Lend:', '  s_endpgm', '']
    o += ref[ref.index('.section .rodata,"a"'):]
    print('nops', a.nn, b.nn, h.nn, 'lines', len(a.out), len(b.out), len(h.out), file=sys.stderr)
    t = '\n'.join(o)
    import subprocess
    open('_t.s', 'w').write(t.replace('CODESZ', '0x1234'))
    subprocess.check_call('clang -x assembler -target amdgcn-amd-amdhsa -mcpu=gfx950 -c _t.s -o _t.o', shell=True)
    sz = [int(l.split()[2], 16) for l in subprocess.check_output('llvm-objdump -h _t.o', shell=True, text=True).split('\n') if ' .text ' in l][0]
    print('code', sz, file=sys.stderr)
    return t.replace('CODESZ', str(sz - 128))
if __name__ == '__main__':
    gen1.STAMP = 'stamp' in sys.argv
    if 'cyc' in sys.argv: gen1.CLK = 's_memtime'
    for a in sys.argv:
        if a.startswith('dbg='): DBGW = int(a[4:])
        if a.startswith('o:'): k, v = a[2:].split('='); O[k] = int(v)
        if a.startswith('ab='): AB.update(a[3:].split(','))
        if a.startswith('enc='): ENC = int(a[4:])
        if a.startswith('sel='): gen1.SEL[:] = [int(x) for x in a[4:].split(',')]
    open(sys.argv[1], 'w').write(build())
```

```python
import re, copy
RX = re.compile(r'\b([vs])(\d+)\b|\b([vs])\[(\d+):(\d+)\]|\b(vcc|exec|m0)\b')
def regs(op):
    out = []
    for m in RX.finditer(op):
        if m.group(1): out.append(m.group(1) + m.group(2))
        elif m.group(3): out += [m.group(3) + str(i) for i in range(int(m.group(4)), int(m.group(5)) + 1)]
        else: out.append(m.group(6))
    return out
TRANS = ('v_exp_', 'v_log_', 'v_rcp_', 'v_rsq_', 'v_sqrt_', 'v_sin_', 'v_cos_')
class Ins:
    def __init__(s, t):
        s.t = t; p = t.split(None, 1); s.m = m = p[0]
        ops = [o.strip() for o in p[1].split(',')] if len(p) > 1 else []
        j = [];
        for o in ops:
            if j and j[-1].count('[') > j[-1].count(']'): j[-1] += ',' + o
            else: j.append(o)
        ops = j
        s.k = 'o'; s.w = []; s.r = []; s.c = []; s.ab = []; s.data = []; s.passes = 0
        R = lambda l: [x for o in l for x in regs(o)]
        if m.startswith('v_mfma'):
            s.k = 'mfma'; s.w = regs(ops[0]); s.ab = R(ops[1:3]); s.c = regs(ops[3]); s.r = s.ab + s.c
            s.passes = 8 if '32x32' in m else 4
        elif m.startswith('v_'):
            s.k = 'valu'; s.w = regs(ops[0]); s.r = R(ops[1:])
            if 'swap' in m: s.w = R(ops[:2]); s.r = list(s.w)
            if m.startswith(('v_dot2c', 'v_fmac', 'v_pk_fmac')): s.c = list(s.w); s.r += s.w
            if m.startswith('v_dot2_'): s.c = regs(ops[3])
            if 'dpp' in m: s.r += s.w
            if m.startswith('v_cndmask') and len(ops) < 4: s.r.append('vcc')
        elif m.startswith('ds_read'):
            s.k = 'dsr'; s.w = regs(ops[0]); s.r = R(ops[1:])
        elif m.startswith('ds_'):
            s.k = 'dsw'; s.r = R(ops)
        elif m.startswith('global_load_lds'):
            s.k = 'vml'; s.w = ['dma']; s.r = R(ops) + ['m0']
        elif m.startswith('global_load'):
            s.k = 'vml'; s.w = regs(ops[0]); s.r = R(ops[1:])
        elif m.startswith('global_store'):
            s.k = 'vms'; s.r = R(ops); s.data = regs(ops[1]) if ('x4' in m or 'x3' in m) else []
        elif m.startswith('s_load') or m.startswith('s_memtime') or m.startswith('s_memrealtime'):
            s.k = 'smem'; s.w = regs(ops[0]); s.r = R(ops[1:])
        elif m.startswith(('s_cmp', 's_bitcmp')):
            s.k = 'salu'; s.r = R(ops)
        elif m.startswith('s_cbranch_vcc'):
            s.k = 'br'; s.r = ['vcc']
        elif m.startswith(('s_cbranch', 's_branch', 's_endpgm')): s.k = 'br'
        elif m in ('s_waitcnt', 's_barrier', 's_nop', 's_setprio', 's_sleep'): s.k = 'o'
        elif m.startswith('s_'):
            s.k = 'salu'; s.w = regs(ops[0]); s.r = R(ops[1:])
            if 'saveexec' in m: s.w.append('exec')
        else: raise Exception('unknown ' + t)
        s.trans = m.startswith(TRANS); s.dot = m.startswith('v_dot')
        s.dpp = 'dpp' in m; s.perm = 'permlane' in m; s.rl = m.startswith(('v_readlane', 'v_readfirstlane'))
def need(p, c):
    n = 0; pw = set(p.w); cr = set(c.r); cw = set(c.w)
    mem = c.k in ('dsr', 'dsw', 'vml', 'vms')
    if p.k == 'mfma':
        if c.k == 'mfma':
            if pw & set(c.ab): n = p.passes + 4
            elif pw & set(c.c) and not (p.w == c.c and p.passes == c.passes): n = p.passes + 2
            elif pw & cw and not pw & set(c.c): n = p.passes + 2
        elif (c.k == 'valu' or mem) and pw & (cr | cw): n = p.passes + 4
        if c.k == 'valu' and set(p.c) & cw: n = max(n, p.passes - 1)
    elif p.k == 'valu':
        v = {x for x in pw if x[0] == 'v' and x != 'vcc'}; sg = pw - v
        if c.k == 'mfma' and v & cr: n = 2
        if c.k == 'valu':
            if v & cr:
                if p.trans: n = max(n, 1)
                if c.dpp or c.perm: n = max(n, 2)
                if c.rl: n = max(n, 1)
            if sg & cr: n = max(n, 2)
        if mem and sg & cr: n = max(n, 5)
        if mem and p.trans and v & cr: n = max(n, 1)
        if p.dot and v & (cr | cw):
            if not (c.m == p.m and set(c.c) == v and sum(x in v for x in c.r) == len(v)): n = max(n, 3)
    elif p.k == 'salu' and 'm0' in pw and c.k == 'vml' and 'm0' in cr: n = 1
    elif p.k == 'vms' and p.data and set(p.data) & cw: n = 2
    elif p.k == 'dsw' and ('b128' in p.m) and c.k == 'valu' and set(p.r) & cw: n = 1
    return n
NL = 0
class S:
    def __init__(s):
        s.out = []; s.hist = []; s.vm = []; s.lg = []; s.nn = 0; s.opt = set(); s.keep = []; s.okey = {}; s.done = {}
    def fork(s):
        n = S(); n.hist = list(s.hist); n.vm = list(s.vm); n.lg = list(s.lg); n.opt = set(s.opt); n.keep = list(s.keep); n.okey = dict(s.okey); n.done = {k: set(v) for k, v in s.done.items()}; return n
    def touch(s, r):
        use = set(regs(r)) | {r}; vm = lg = None
        for n, p in enumerate(s.vm):
            if set(p.w) & use: vm = len(s.vm) - n - 1
        for n, p in enumerate(s.lg):
            if set(p.w) & use: lg = len(s.lg) - n - 1
        s.wait(vm, lg)
    def raw(s, t): s.out.append(t)
    def label(s, l): s.out.append(l + ':')
    def _emit(s, t, i, w=1):
        s.out.append('  ' + t); s.hist.append((i, w)); s.hist = s.hist[-48:]
    def wait(s, vm=None, lg=None):
        p = []
        if vm is not None and len(s.vm) > vm:
            s.vm = s.vm[len(s.vm) - vm:] if vm else []
            p.append(f'vmcnt({min(63, sum(id(x) not in s.opt for x in s.vm))})')
        if lg is not None and len(s.lg) > lg:
            if any(x.k == 'smem' for x in s.lg): lg = 0
            s.lg = s.lg[len(s.lg) - lg:] if lg else []
            p.append(f'lgkmcnt({min(15, sum(id(x) not in s.opt for x in s.lg))})')
        if p: s._emit('s_waitcnt ' + ' '.join(p), Ins('s_waitcnt 0'))
    def cond(s, br, body, key=None):
        global NL; NL += 1; l = f'Lc{NL}'
        s(f'{br} {l}'); vm0, lg0, h0 = list(s.vm), list(s.lg), list(s.hist)
        mine = [x for x in vm0 + lg0 if key and s.okey.get(id(x)) == key]
        for x in mine: s.opt.discard(id(x))
        if key:
            s.vm = [x for x in s.vm if s.okey.get(id(x)) != (key[0], not key[1])]
            s.lg = [x for x in s.lg if s.okey.get(id(x)) != (key[0], not key[1])]
        body(s); s.label(l)
        nv = [x for x in s.vm if x not in vm0]; nl = [x for x in s.lg if x not in lg0]
        for x in nv + nl: s.okey[id(x)] = key
        for x in nv + nl + mine: s.opt.add(id(x)); s.keep.append(x)
        def alive(x, q):
            if x in q or not key: return True
            k = s.okey.get(id(x))
            if k == key: return False
            if k == (key[0], not key[1]): return True
            d = s.done.setdefault(id(x), set()); d.add(key); s.keep.append(x)
            return (key[0], not key[1]) not in d
        s.vm = [x for x in vm0 if alive(x, s.vm)] + nv; s.lg = [x for x in lg0 if alive(x, s.lg)] + nl
        s.hist = h0 + [(p, 0) for p, w in s.hist if all(p is not q for q, _ in h0)]
    def __call__(s, t):
        if isinstance(t, (list, tuple)):
            for x in t: s(x)
            return
        if callable(t): return t(s)
        if '\n' in t:
            for x in t.split('\n'):
                x = x.split(';')[0].strip()
                if x: s(x)
            return
        i = Ins(t); use = (set(i.r) | set(i.w)) - {'dma'}; vm = lg = None
        for q, k in ((s.vm, 'vm'), (s.lg, 'lg')):
            for n, p in enumerate(q):
                if set(p.w) & use:
                    if k == 'vm': vm = len(q) - n - 1
                    else: lg = len(q) - n - 1
        s.wait(vm, lg)
        d = 0; n = 0
        for p, w in reversed(s.hist):
            n = max(n, need(p, i) - d); d += w
        if n > 0:
            s.nn += n
            while n > 0:
                k = min(n, 16); s._emit(f's_nop {k-1}', Ins('s_nop 0'), k); n -= k
        w = 1
        if i.m == 's_nop': w = int(t.split()[1]) + 1
        s._emit(t, i, w)
        if i.k in ('vml', 'vms'): s.vm.append(i)
        if i.k == 'vms' and 'sc1' not in t: s.opt.add(id(i)); s.keep.append(i)
        if i.k in ('dsr', 'dsw', 'smem'): s.lg.append(i)
    def barrier(s, keep=False):
        n = len(s.lg)
        if keep:
            n = 0
            for k, p in enumerate(s.lg):
                if p.k == 'dsw': n = k + 1
        if n: s.wait(lg=len(s.lg) - n)
        s('s_barrier')
def weave(main, fill, start=0, end=None):
    end = len(main) if end is None else end
    out = []; n = end - start; k = 0
    for i, m in enumerate(main):
        out.append(m)
        if start <= i < end:
            t = (len(fill) * (i - start + 1) + n - 1) // n
            out += fill[k:t]; k = t
    return out + fill[k:]
def L(t): return [x.split(';')[0].strip() for x in t.split('\n') if x.split(';')[0].strip()]
```

```python
from dsl import *
import struct, math
def fb(x): return hex(struct.unpack('<I', struct.pack('<f', x))[0])
def V(a, n): return f'v[{a}:{a+n-1}]'
W1F, F1, STATS, XT, W1S, W2S, HT, PART, DBG = 4096, 32768, 65536, 131072, 0x400000, 0x600000, 0x800000, 0xA00000, 0x2000000
F2 = F1 + 4096
GS, ROW, HI = 30208, 528, 16896
RB, RCH, RCP = 120832, 8320, 4160
UB, UCH = 137472, 4576
YB, VB = 0, 40960
HB, HR = 61440, 912
GB, OB, SB = 0, 32768, 120832
LDS = 146688
SPIN = 20000
LOG2E = 1.4426950408889634
TAG = 's34'; W = 's35'; C = 's37'; TILE = 's38'; J = 's39'
def base(s, d, src, off):
    s(f's_add_u32 s{d}, s{src}, {off}'); s(f's_addc_u32 s{d+1}, s{src+1}, 0')
O = {}
STAMP = False
CLK = 's_memrealtime'
SEL = list(range(16))
def stamp(s, n):
    if STAMP and n in SEL:
        n = SEL.index(n); s(f'{CLK} s[{70+2*n}:{71+2*n}]')
def prologue(s):
    s('''s_load_dwordx16 s[4:19], s[0:1], 0
    s_load_dwordx2 s[32:33], s[0:1], 112
    s_load_dwordx8 s[20:27], s[0:1], 64
    s_load_dwordx4 s[28:31], s[0:1], 96
    s_getpc_b64 s[68:69]
    s_cmp_ge_u32 s2, 256
    s_cbranch_scc1 Lend''')
    stamp(s, 0)
    s('''v_lshrrev_b32 v11, 6, v0
    v_and_b32 v1, 63, v0
    v_readfirstlane_b32 s35, v11
    s_sub_u32 s36, s2, 32
    s_cselect_b32 s42, 0, s36
    s_lshr_b32 s43, s42, 3
    s_and_b32 s42, s42, 7
    s_mul_i32 s37, s42, 28
    s_add_u32 s37, s37, s43
    ''')
    if O.get('t4'): s('''s_lshr_b32 s39, s43, 2
    s_and_b32 s43, s43, 3
    s_lshl_b32 s42, s42, 2
    s_add_u32 s38, s42, s43''')
    else: s('''s_and_b32 s38, s42, 1
    s_mul_i32 s38, s38, 28
    s_add_u32 s43, s43, s38
    s_lshr_b32 s39, s43, 3
    s_and_b32 s43, s43, 7
    s_and_b32 s42, s42, 6
    s_lshl_b32 s42, s42, 2
    s_add_u32 s38, s42, s43''')
    s('''    s_lshl_b32 s42, s37, 10
    v_and_b32 v28, 255, v0
    v_lshl_add_u32 v28, v28, 2, s42
    s_lshl_b32 s49, s37, 2
    s_mul_i32 s3, s2, 7168
    s_cmp_eq_u32 s35, 7
    s_cselect_b32 s42, 0, s35
    s_lshl_b32 s42, s42, 7
    s_add_u32 s46, s42, s3
    v_lshrrev_b32 v15, 3, v1
    v_and_b32 v14, 7, v1
    v_mul_u32_u24 v12, 896, v15
    v_lshl_add_u32 v12, v14, 4, v12
    v_and_b32 v11, 3, v0
    v_lshrrev_b32 v16, 2, v0
    v_mul_u32_u24 v18, 3584, v16
    v_lshl_add_u32 v18, v11, 4, v18
    s_lshr_b32 s50, s37, 3
    s_lshl_b32 s50, s50, 1
    s_and_b32 s42, s37, 1
    s_add_u32 s50, s50, s42
    s_bfe_u32 s51, s37, 0x20001
    s_mul_i32 s48, s51, 401408
    s_lshl_b32 s43, s50, 6
    s_add_u32 s48, s48, s43
    v_lshlrev_b32 v13, 4, v0''')
    s.wait(lg=0); stamp(s, 39)
    base(s, 44, 4, 's46')
    if O.get('xo'):
        s("""global_load_dwordx4 v[64:67], v12, s[44:45]
        s_load_dword s34, s[32:33], 0
        s_load_dword s40, s[14:15], s49
        global_load_dword v29, v28, s[6:7]
        global_load_dword v30, v28, s[8:9]""")
    else:
        s("""global_load_dword v29, v28, s[6:7]
        global_load_dword v30, v28, s[8:9]
        s_load_dword s40, s[14:15], s49
        s_load_dword s34, s[32:33], 0
        global_load_dwordx4 v[64:67], v12, s[44:45]""")
    s("""global_load_dword v31, v28, s[10:11]
    global_load_dword v32, v28, s[12:13]
    s_load_dword s41, s[16:17], s49""")
def pretouch(s):
    s("""v_min_u32 v11, 4, v1
    v_lshlrev_b32 v11, 21, v11
    v_add_u32 v11, 0x1f0000, v11
    v_cmp_eq_u32 vcc, 0, v1
    v_mov_b32 v16, 0xc000
    v_cndmask_b32 v11, v11, v16, vcc
    global_load_dword v254, v11, s[32:33]""")
def code_prefetch(s):
    s('''v_lshlrev_b32 v11, 7, v0
    v_min_u32 v11, CODESZ, v11
    global_load_dword v255, v11, s[68:69]''')
def mktag(s): s('s_xor_b32 s34, s34, 0x5bd1e995')
XS = RB + 8192
def xt_addr(s):
    s('s_lshl_b32 s42, s3, 1'); s(f's_add_u32 s42, s42, {XT+3584}'); base(s, 46, 32, 's42')
    s(f'''s_mul_i32 s42, s35, 1280
    s_add_u32 s42, s42, {XS}
    v_mul_u32_u24 v15, 160, v15
    v_lshl_add_u32 v14, v14, 4, v15
    v_add_u32 v14, s42, v14
    v_and_b32 v15, 3, v1
    v_mul_u32_u24 v15, 320, v15
    v_lshrrev_b32 v16, 2, v1
    v_lshl_add_u32 v15, v16, 3, v15
    v_add_u32 v15, s42, v15''')
def xt_finish(s):
    s('''ds_write_b128 v14, v[64:67]
    ds_read_b32 v20, v15
    ds_read_b32 v22, v15 offset:160
    ds_read_b32 v24, v15 offset:4
    ds_read_b32 v26, v15 offset:164
    v_mov_b32 v21, s34
    v_mov_b32 v23, s34
    v_mov_b32 v25, s34
    v_mov_b32 v27, s34
    global_store_dwordx4 v13, v[20:23], s[46:47] offset:-3584 sc1
    global_store_dwordx4 v13, v[24:27], s[46:47] offset:3584 sc1''')
def st_issue(s):
    for i in range(1, 7): s(f'global_load_dwordx4 {V(64+4*i,4)}, v12, s[44:45] offset:{128*i}')
def st_prefill(s):
    s('s_lshl_b32 s42, s37, 13'); s(f's_add_u32 s42, s42, {HT+4096}'); base(s, 52, 32, 's42')
    s('v_lshlrev_b32 v17, 4, v1'); s([f'v_mov_b32 v{20+i}, -1' for i in range(4)])
    for i in range(8): s(f'global_store_dwordx4 v17, v[20:23], s[52:53] offset:{1024*i-4096} sc1')
def bf16r(s, d, a):
    s(f'v_cvt_pk_bf16_f32 {d}, {a}, {a}'); s(f'v_and_b32 {d}, 0xffff0000, {d}')
def st_finish(s):
    s('''v_mov_b32 v14, 0x3f803f80
    v_mov_b32 v16, 0
    v_mov_b32 v17, 0
    v_mov_b32 v18, 0
    v_mov_b32 v19, 0''')
    for i in range(28):
        s(f'v_dot2c_f32_bf16 v{16+(i&1)}, v{64+i}, v14'); s(f'v_dot2c_f32_bf16 v{18+(i&1)}, v{64+i}, v{64+i}')
    s('''v_add_f32 v16, v16, v17
    v_add_f32 v18, v18, v19''')
    for d in ('quad_perm:[1,0,3,2]', 'quad_perm:[2,3,0,1]', 'row_half_mirror'):
        s(f'v_add_f32_dpp v16, v16, v16 {d} row_mask:0xf bank_mask:0xf')
        s(f'v_add_f32_dpp v18, v18, v18 {d} row_mask:0xf bank_mask:0xf')
    s(f'''v_mul_f32 v16, {fb(1/448)}, v16
    v_mul_f32 v18, {fb(1/448)}, v18
    v_fma_f32 v18, -v16, v16, v18
    v_max_f32 v18, 0, v18''')
    bf16r(s, 'v18', 'v18'); s(f'v_add_f32 v18, {fb(1e-5)}, v18'); bf16r(s, 'v18', 'v18')
    s('''v_sqrt_f32 v18, v18
    v_mov_b32 v15, s34
    v_cvt_pk_bf16_f32 v14, v16, v18
    v_and_b32 v11, 7, v1
    v_cmp_eq_u32 vcc, 0, v11
    s_lshl_b32 s42, s2, 6''')
    s(f's_add_u32 s42, s42, {STATS}'); base(s, 46, 32, 's42')
    s('''s_and_saveexec_b64 s[48:49], vcc
    global_store_dwordx2 v1, v[14:15], s[46:47] sc1
    s_mov_b64 exec, s[48:49]''')
def tr_addr(s, d, t):
    s(f'''v_lshrrev_b32 {d}, 5, v1
    v_bfe_u32 {t}, v1, 2, 2
    v_lshl_add_u32 {d}, {d}, 3, {t}
    v_bfe_u32 {t}, v1, 4, 1
    v_lshlrev_b32 {d}, 6, {d}
    v_lshl_add_u32 {d}, {t}, 5, {d}
    v_and_b32 {t}, 3, v1
    v_lshl_add_u32 {d}, {t}, 3, {d}''')
def w1_issue(s):
    base(s, 52, 20, 's48'); s('global_load_dwordx4 v[92:95], v18, s[52:53]')
def w1_unit(s):
    s(f'v_add_u32 v19, {RB}, v13')
    tr_addr(s, 'v33', 'v11')
    s(f'''s_lshl_b32 s42, s35, 10
    s_add_u32 s42, s42, {RB}
    v_add_u32 v33, s42, v33
    s_mul_i32 s42, s50, 28
    s_mul_i32 s43, s51, 7
    s_add_u32 s42, s42, s43
    s_lshl_b32 s42, s42, 10
    s_add_u32 s42, s42, {W1S}'''); base(s, 52, 32, 's42')
def w1_unit2(s):
    s('''ds_write_b128 v19, v[92:95]
    ds_read_b64_tr_b16 v[96:97], v33
    ds_read_b64_tr_b16 v[98:99], v33 offset:256
    global_store_dwordx4 v13, v[96:99], s[52:53] sc1''')
def w1_flag(s, vm=0):
    s('''s_lshl_b32 s42, s50, 2
    s_add_u32 s42, s42, s51
    s_lshl_b32 s42, s42, 5
    s_add_u32 s42, s42, s35
    s_lshl_b32 s42, s42, 2''')
    s(f's_add_u32 s42, s42, {W1F}'); base(s, 52, 32, 's42')
    s('''v_mov_b32 v18, 0
    v_mov_b32 v19, s34''')
    s.wait(vm=vm)
    s('''s_mov_b64 exec, 1
    global_store_dword v18, v19, s[52:53] sc1
    s_mov_b64 exec, -1''')
def exp_addr(s):
    s(f'''v_and_b32 v11, 255, v0
    v_lshlrev_b32 v11, 3, v11
    v_sub_u32 v11, 2047, v11
    v_cvt_f32_u32 v11, v11
    s_lshr_b32 s42, s35, 2
    s_mul_i32 s42, s42, {2*GS}''')
    for e in range(9): s(f'v_add_f32 v{34+e}, {fb(-e)}, v11')
    s('v_max_f32 v42, 0, v42')
    for e in range(0, 9, 2): s(f'v_cvt_pk_bf16_f32 v{34+e}, v{34+e}, v{34+min(e+1,8)}')
    for e in range(0, 9, 2):
        if e < 8: s(f'v_and_b32 v{35+e}, 0xffff0000, v{34+e}')
        s(f'v_lshlrev_b32 v{34+e}, 16, v{34+e}')
    for e in range(9): s(f'v_cvt_u32_f32 v{34+e}, v{34+e}')
    for e in range(9):
        p = f'v{34+e}'; d = f'v{2+e}'
        s(f'''v_lshrrev_b32 {d}, 8, {p}
        v_and_b32 v11, 7, {p}
        v_lshl_add_u32 {d}, {d}, 3, v11
        v_bfe_u32 v11, {p}, 3, 5
        v_lshl_add_u32 {d}, {d}, 5, v11
        v_lshl_add_u32 {d}, {d}, 2, s42''')
def kg_setup(s, isB):
    lo = LOG2E - struct.unpack('<f', struct.pack('<f', LOG2E))[0]
    s(f'''s_and_b32 s42, s35, 2
    s_lshl_b32 s42, s42, 3
    s_lshr_b32 s43, s40, s42
    s_lshl_b32 s43, s43, 16
    s_mov_b32 s48, {fb(LOG2E)}
    v_mov_b32 v39, s43
    v_mul_f32 v38, s48, v39
    v_fma_f32 v40, s48, v39, -v38
    v_fmac_f32 v40, {fb(lo)}, v39
    v_exp_f32 v38, v38
    v_mul_f32 v40, {fb(math.log(2))}, v40
    v_fmac_f32 v38, v38, v40''')
    bf16r(s, 'v38', 'v38')
    s(f'''s_and_b32 s42, s35, 3
    s_mul_i32 s42, s42, {GS}
    s_add_u32 s54, s42, {HI if isB else 0}
    v_lshl_add_u32 v33, v1, 3, s54
    v_lshlrev_b32 v34, 16, v29
    v_and_b32 v35, 0xffff0000, v29
    v_mul_f32 v34, s48, v34
    v_mul_f32 v35, s48, v35
    v_exp_f32 v34, v34
    v_exp_f32 v35, v35
    v_lshlrev_b32 v36, 16, v30
    v_and_b32 v37, 0xffff0000, v30
    v_cvt_pk_bf16_f32 v35, v34, v35
    v_mul_f32 v36, v38, v36
    v_mul_f32 v37, v38, v37
    v_lshlrev_b32 v34, 16, v35
    v_and_b32 v35, 0xffff0000, v35
    v_mul_f32 v34, v38, v34
    v_mul_f32 v35, v38, v35
    v_mul_f32 v36, {fb((-1 if isB else 1)/(2*math.pi))}, v36
    v_mul_f32 v37, {fb((-1 if isB else 1)/(2*math.pi))}, v37
    v_mul_f32 v34, {fb(-LOG2E)}, v34
    v_mul_f32 v35, {fb(-LOG2E)}, v35''')
def cpow(s, d, p):
    s(f'''v_mul_f32 v60, {fb(p)}, v34
    v_mul_f32 v61, {fb(p)}, v35
    v_mul_f32 v62, {fb(p)}, v36
    v_mul_f32 v63, {fb(p)}, v37
    v_exp_f32 v60, v60
    v_exp_f32 v61, v61
    v_fract_f32 v62, v62
    v_fract_f32 v63, v63
    v_cos_f32 v{d}, v62
    v_cos_f32 v{d+1}, v63
    v_sin_f32 v{d+2}, v62
    v_sin_f32 v{d+3}, v63
    v_pk_mul_f32 {V(d,2)}, {V(d,2)}, v[60:61]
    v_pk_mul_f32 {V(d+2,2)}, {V(d+2,2)}, v[60:61]''')
def cmul(d, a, m, t):
    return [f'v_pk_mul_f32 {V(t,2)}, {V(a,2)}, {V(m,2)}', f'v_pk_mul_f32 {V(t+2,2)}, {V(a,2)}, {V(m+2,2)}',
            f'v_pk_fma_f32 {V(d,2)}, {V(a+2,2)}, {V(m+2,2)}, {V(t,2)} neg_lo:[1,0,0] neg_hi:[1,0,0]',
            f'v_pk_fma_f32 {V(d+2,2)}, {V(a+2,2)}, {V(m,2)}, {V(t+2,2)}']
cw = [0, 0]
def crow(a, row, k=0):
    c = 128 + 6 * k + 2 * (cw[k] % 3); cw[k] += 1
    return [f'v_cvt_pk_bf16_f32 v{c}, v{a}, v{a+1}', f'v_cvt_pk_bf16_f32 v{c+1}, v{a+2}, v{a+3}', f'ds_write_b64 v33, {V(c,2)} offset:{row*ROW}']
def zipl(a, b):
    o = []
    for i in range(max(len(a), len(b))): o += a[i:i+1] + b[i:i+1]
    return o
def kg_lo(s, mid, fill=[]):
    cpow(s, 40, 8); cpow(s, 48, 128)
    s('''v_mov_b32 v128, 0x3f803f80
    v_mov_b32 v129, 0
    ds_write_b64 v33, v[128:129]'''); cw[0] = 1
    a = crow(40, 1) + cmul(44, 40, 40, 52) + crow(44, 2); b = crow(48, 16, 1)
    for j in range(3, 16): a += cmul(44, 44, 40, 52) + crow(44, j)
    for j in range(17, 32): b += cmul(48, 48, 40, 56) + crow(48, j, 1)
    o = weave(zipl(a, b), fill, 0, 100); n = len(o) * 2 // 3; s(o[:n]); mid(s); s(o[n:])
HROW = {256:8, 258:9, 512:10, 768:11, 260:12, 262:13, 516:14, 772:15, 1024:16, 1280:17, 1536:18, 1792:19, 2048:24}
def kg_hi(s, mid, fill=[]):
    cpow(s, 40, 1); cpow(s, 44, 256)
    s('''v_add_f32 v38, v38, v38
    v_lshlrev_b32 v48, 16, v31
    v_and_b32 v49, 0xffff0000, v31
    v_lshlrev_b32 v50, 16, v32
    v_and_b32 v51, 0xffff0000, v32
    v_mul_f32 v48, v38, v48
    v_mul_f32 v49, v38, v49
    v_mul_f32 v50, -v38, v50
    v_mul_f32 v51, -v38, v51''')
    s(cmul(52, 48, 44, 60))
    a = crow(48, 0); b = crow(52, 8, 1)
    for p in range(1, 8):
        a += cmul(48, 48, 40, 56) + crow(48, p)
        if p in (2, 6): a += cmul(124, 48, 44, 56) + crow(124, HROW[256+p])
        if p == 4: a += cmul(140, 48, 44, 56) + crow(140, 12)
    for p in range(512, 2049, 256): b += cmul(52, 52, 44, 60) + crow(52, HROW[p], 1)
    b += cmul(140, 140, 44, 60) + crow(140, 14, 1) + cmul(140, 140, 44, 60) + crow(140, 15, 1)
    o = weave(zipl(a, b), fill, 0, 60); n = len(o) // 2; s(o[:n]); mid(s); s(o[n:])
def kg_mfma(s):
    s(f'''v_and_b32 v11, 31, v1
    v_lshrrev_b32 v12, 5, v1
    v_mul_u32_u24 v13, {ROW}, v11
    v_lshl_add_u32 v13, v12, 4, v13
    v_add_u32 v13, s54, v13
    v_lshlrev_b32 v12, 9, v12
    v_lshl_add_u32 v12, v11, 2, v12
    v_add_u32 v12, s54, v12''')
def kg_mfma2(s):
    rd = lambda k: [f'ds_read_b128 {V(80+8*(k%6),4)}, v13 offset:{HI+32*k}', f'ds_read_b128 {V(84+8*(k%6),4)}, v13 offset:{32*k}']
    for k in range(5): s(rd(k))
    for k in range(16):
        if k + 5 < 16: s(rd(k + 5))
        s(f'v_mfma_f32_32x32x16_bf16 v[64:79], {V(80+8*(k%6),4)}, {V(84+8*(k%6),4)}, {"0" if k==0 else "v[64:79]"}')
    for r, p in enumerate([0,1,2,3,256,258,512,768,1024,1280,1536,1792,2048]):
        s(f'ds_write_b32 v12, v{64+r} offset:{((p>>8)*8+(p&7))*128}')
def expand(s):
    for e in range(9): s(f'ds_read2st64_b32 {V(12+2*e,2)}, v{2+e} offset0:0 offset1:{GS//256}')
    s(f'''v_and_b32 v11, 255, v0
    s_lshr_b32 s42, s35, 2
    s_mul_i32 s42, s42, {RCH}
    s_add_u32 s42, s42, {RB}
    v_cmp_ne_u32 vcc, 255, v11
    v_lshl_add_u32 v11, v11, 4, s42''')
    for e in range(9): s(f'v_add_f32 v{12+2*e}, v{12+2*e}, v{13+2*e}')
    s('v_cndmask_b32 v28, 0, v28, vcc')
    for i in range(4): s(f'v_cvt_pk_bf16_f32 v{4+i}, v{12+4*i}, v{14+4*i}')
    s('ds_write_b128 v11, v[4:7]')
    for i in range(4): s(f'v_cvt_pk_bf16_f32 v{32+i}, v{14+4*i}, v{16+4*i}')
    s(f'ds_write_b128 v11, v[32:35] offset:{RCP}')
def zero_pads(s):
    s(f'''s_mul_i32 s42, s35, {RCP}
    s_add_u32 s42, s42, {RB+4096-4*RCP}
    v_and_b32 v11, 7, v1
    v_lshl_add_u32 v11, v11, 2, s42
    v_mov_b32 v14, 0
    v_mov_b32 v15, 0
    ds_write_b32 v11, v14
    s_and_b32 s42, s35, 1
    s_mul_i32 s42, s42, {UCH}
    s_add_u32 s42, s42, {UB}
    v_min_u32 v11, 59, v1
    v_lshl_add_u32 v11, v11, 3, s42
    ds_write_b64 v11, v[14:15]''')
def spin_begin(s, l):
    s(f's_mov_b32 s55, {SPIN}'); s.label(l)
def spin_end(s, l):
    s(f'''s_cbranch_vccz {l}x
    s_sub_u32 s55, s55, 1
    s_cmp_lg_u32 s55, 0
    s_cbranch_scc1 {l}'''); s.label(l + 'x')
def ug_addr(s):
    s(f'''v_and_b32 v36, 255, v0
    v_lshrrev_b32 v37, 2, v36
    v_and_b32 v38, 3, v36
    v_mul_u32_u24 v37, 14336, v37
    v_lshl_add_u32 v37, v38, 4, v37
    v_lshlrev_b32 v38, 4, v36
    s_and_b32 s42, s37, 1
    s_mul_i32 s42, s42, 7168
    s_lshr_b32 s43, s37, 1
    s_lshl_b32 s43, s43, 6
    s_add_u32 s42, s42, s43
    s_add_u32 s42, s42, {XT}''')
    base(s, 56, 32, 's42')
    for i in range(1, 4): base(s, 56 + 2*i, 54 + 2*i, 64*14336)
    base(s, 64, 32, STATS + 4096); base(s, 66, 32, STATS + 12288)
def ug_issue(s):
    for i in range(4):
        s(f'global_load_dwordx4 {V(64+4*i,4)}, v38, s[{64+2*(i>>1)}:{65+2*(i>>1)}] offset:{-4096 if i%2==0 else 0} sc1')
        s(f'global_load_dwordx4 {V(80+4*i,4)}, v37, s[{56+2*i}:{57+2*i}] sc1')
def ug_check(s):
    s('v_min_u32 v39, v65, v67'); s('v_max_u32 v40, v65, v67')
    for i in [4,1,5,2,6,3,7]:
        s(f'v_min3_u32 v39, v39, v{65+4*i}, v{67+4*i}'); s(f'v_max3_u32 v40, v40, v{65+4*i}, v{67+4*i}')
    s('''v_xor_b32 v39, s34, v39
    v_xor_b32 v40, s34, v40
    v_or_b32 v39, v39, v40
    v_cmp_ne_u32 vcc, 0, v39''')
def ubuild(s):
    s(f'v_lshlrev_b32 v36, 2, v36'); s(f'v_add_u32 v39, {UB+480}, v36')
    for t in range(8):
        ms = 64 + 2*t; x = 80 + 2*t
        s(f'''v_and_b32 v{ms+1}, 0xffff0000, v{ms}
        v_lshlrev_b32 v{ms}, 16, v{ms}
        v_rcp_f32 v{ms+1}, v{ms+1}
        v_lshlrev_b32 v{96+2*t}, 16, v{x}
        v_and_b32 v{97+2*t}, 0xffff0000, v{x}
        v_pk_add_f32 {V(112+2*t,2)}, {V(96+2*t,2)}, {V(ms,2)} op_sel_hi:[1,0] neg_lo:[0,1] neg_hi:[0,1]
        v_pk_mul_f32 {V(112+2*t,2)}, {V(112+2*t,2)}, {V(ms,2)} op_sel:[0,1]''')
        if t & 1:
            i = t >> 1
            s(f'''v_cvt_pk_bf16_f32 v{48+2*i}, v{110+2*t}, v{112+2*t}
            v_cvt_pk_bf16_f32 v{49+2*i}, v{111+2*t}, v{113+2*t}
            ds_write_b32 v39, v{48+2*i} offset:{1024*i}
            ds_write_b32 v39, v{49+2*i} offset:{1024*i+UCH}''')
def vbuild(s):
    s(f'''s_lshl_b32 s42, s41, 16
    s_and_b32 s43, s41, 0xffff0000
    v_and_b32 v36, 255, v0
    v_lshrrev_b32 v37, 7, v36
    v_mul_u32_u24 v37, 1280, v37
    v_bfe_u32 v38, v36, 1, 2
    v_mul_u32_u24 v38, 320, v38
    v_add_u32 v37, v37, v38
    v_bfe_u32 v38, v36, 3, 4
    v_lshl_add_u32 v37, v38, 4, v37
    v_and_b32 v38, 1, v36
    v_lshl_add_u32 v37, v38, 3, v37''')
    for i in range(4):
        for ch in range(2):
            d = 64 + 4*i + 2*ch
            s(f'''v_fma_f32 v{d}, v{112+4*i+ch}, s{42+ch}, v{96+4*i+ch}
            v_fma_f32 v{d+1}, v{114+4*i+ch}, s{42+ch}, v{98+4*i+ch}
            ds_write_b64 v37, {V(d,2)} offset:{VB+10240*ch+2560*i}''')
def conv_addr(s):
    s(f'''v_and_b32 v11, 15, v1
    v_lshrrev_b32 v12, 4, v1
    s_lshr_b32 s42, s35, 1
    s_and_b32 s43, s35, 1
    s_mul_i32 s48, s42, {RCH}
    s_lshl_b32 s49, s43, 8
    s_sub_u32 s48, s48, s49
    s_add_u32 s48, s48, {RB + 2*(2031 - 32*(8+3)) }
    v_lshlrev_b32 v13, 3, v12
    v_sub_u32 v13, v13, v11
    v_and_b32 v14, 1, v11
    v_mul_u32_u24 v14, {RCP-2}, v14
    v_lshl_add_u32 v13, v13, 1, s48
    v_add_u32 v13, {RCP-2}, v13
    v_sub_u32 v2, v13, v14
    v_subrev_u32 v3, 1024, v2
    v_subrev_u32 v4, 2048, v2
    v_subrev_u32 v5, 3072, v2
    s_mul_i32 s48, s42, {UCH}
    s_sub_u32 s48, s48, s49
    s_add_u32 s48, s48, {UB + 448 - 192}
    v_lshlrev_b32 v6, 5, v11
    v_lshl_add_u32 v6, v12, 4, v6
    v_add_u32 v6, s48, v6
    s_mul_i32 s48, s35, 10240
    v_mul_u32_u24 v7, 320, v12
    v_lshl_add_u32 v7, v11, 4, v7
    v_add_u32 v7, s48, v7''')
def conv(s, fill, f0, f1):
    NA, NB = 5, 10
    mf = [(r, sg, mu) for r in range(4) for sg in range(8) for mu in range(8 - sg)]
    last = {}
    for n, (r, sg, mu) in enumerate(mf): last[('A', r, sg)] = n; last[('B', r, mu)] = n
    order = []
    for (r, sg, mu) in mf:
        for k in (('A', r, sg), ('B', r, mu)):
            if k not in order: order.append(k)
    qa = [k for k in order if k[0] == 'A']; qb = [k for k in order if k[0] == 'B']
    fa = [16 + 4*i for i in range(NA)]; fbb = [96 + 4*i for i in range(NB)]; slot = {}
    def ld(k):
        if k[0] == 'A':
            d = slot[k] = fa.pop(0); o = 128*(1 - (k[2] & 1)) + 16*(3 - k[1]); a = 2 + (k[2] >> 1)
            return [f'ds_read2_b32 {V(d,2)}, v{a} offset0:{o} offset1:{o+1}', f'ds_read2_b32 {V(d+2,2)}, v{a} offset0:{o+2} offset1:{o+3}']
        d = slot[k] = fbb.pop(0)
        return [f'ds_read_b128 {V(d,4)}, v6 offset:{512*k[2] + 64*(3-k[1])}']
    s(ld(qa.pop(0)))
    for i in range(8): s(ld(qb.pop(0)))
    items = []; seen = set()
    for n, (r, sg, mu) in enumerate(mf):
        R = sg + mu; acc = V(64 + 4*R, 4)
        it = [f'v_mfma_f32_16x16x32_bf16 {acc}, {V(slot[("A",r,sg)],4)}, {V(slot[("B",r,mu)],4)}, {acc if R in seen else 0}']
        seen.add(R)
        if last[('A', r, sg)] == n: fa.append(slot[('A', r, sg)])
        if last[('B', r, mu)] == n: fbb.append(slot[('B', r, mu)])
        if qa and fa: it += ld(qa.pop(0))
        if qb and fbb: it += ld(qb.pop(0))
        items.append(it)
    yw = lambda R: f'ds_write_b128 v7, {V(64+4*R,4)} offset:{YB+1280*R}'
    for R in range(5): items[mf.index((3, R, 0)) + 6].append(yw(R))
    s(weave(items, fill, f0, f1))
    for R in range(5, 8): s(yw(R))
def epilogue(s):
    s(f"""v_and_b32 v38, 3, v1
    v_mul_u32_u24 v38, 320, v38
    v_lshrrev_b32 v37, 2, v1
    v_lshl_add_u32 v37, v37, 4, v38
    s_mul_i32 s43, s35, 1280
    v_add_u32 v37, s43, v37
    v_lshlrev_b32 v36, 4, v0
    s_lshl_b32 s42, s37, 13
    s_add_u32 s42, s42, {HT}""")
    base(s, 18, 32, 's42')
def epilogue2(s):
    for h in range(2):
        s(f"""ds_read_b128 {V(16+4*h,4)}, v37 offset:{VB+10240*h}
        ds_read_b128 {V(24+4*h,4)}, v37 offset:{YB+20480*h}
        ds_read_b128 {V(48+4*h,4)}, v37 offset:{YB+10240+20480*h}""")
    for i in (0, 1, 2, 3):
        s(f"""v_pk_add_f32 {V(24+2*i,2)}, {V(24+2*i,2)}, {V(48+2*i,2)}
        v_pk_add_f32 {V(16+2*i,2)}, {V(16+2*i,2)}, {V(24+2*i,2)}""")
    for i in range(4): s(f'v_cvt_pk_bf16_f32 v{40+i}, v{16+i}, v{20+i}')
    s('global_store_dwordx4 v36, v[40:43], s[18:19] sc1')
```

```python
from gen1 import *
import gen1
def flag_hf(s, d):
    base(s, d, 32, W1F + 28)
    s(f'''v_and_b32 v44, 255, v0
    v_min_u32 v44, 223, v44
    v_lshlrev_b32 v44, 7, v44
    global_load_dword v45, v44, s[{d}:{d+1}] sc1''')
def flag_addr(s, d, off, unit, w1=False):
    s(f'''s_lshl_b32 s42, {unit}, 9
    s_add_u32 s42, s42, {off}'''); base(s, d, 32, 's42')
    s(f'''v_and_b32 v44, 3, v1
    v_lshlrev_b32 v44, 7, v44''')
    if w1: s('''v_bfe_u32 v45, v1, 2, 3
    v_min_u32 v45, 6, v45
    v_lshl_add_u32 v44, v45, 2, v44''')
    s(f'''global_load_dword v45, v44, s[{d}:{d+1}] sc1''')
def flag_wait(s, d, l):
    s('v_cmp_ne_u32 vcc, s34, v45')
    def body(s):
        spin_begin(s, l)
        s(f'global_load_dword v45, v44, s[{d}:{d+1}] sc1'); s('v_cmp_ne_u32 vcc, s34, v45')
        spin_end(s, l)
    s.cond('s_cbranch_vccz', body)
def w1_addr(s):
    s('''s_lshl_b32 s50, s39, 3
    s_add_u32 s50, s50, s35''')
    flag_addr(s, 52, W1F, 's50', True)
def w1_loads(va='v10'):
    o = L(f'''s_mul_i32 s42, s50, 28672
    s_add_u32 s42, s42, {W1S+4096}
    s_add_u32 s52, s32, s42
    s_addc_u32 s53, s33, 0
    v_lshlrev_b32 {va}, 4, v1''')
    o = [o]
    for k in range(28):
        it = [f'global_load_dwordx4 {V(144+4*k,4)}, {va}, s[52:53] offset:{1024*(k%8)-4096} sc1']
        if k % 8 == 7: it += ['s_add_u32 s52, s52, 8192', 's_addc_u32 s53, s53, 0']
        o.append(it)
    return o
def part_base(s, d, dst, slot, extra=0):
    s(f'''s_mul_i32 s42, s38, 7
    s_add_u32 s42, s42, {dst}
    s_mul_i32 s42, s42, 49152
    s_add_u32 s42, s42, {PART + slot*8192 + extra}'''); base(s, d, 32, 's42')

AB = set()
XG = F2 + 4096
HINT = 0x3C0000
def xg_base(s):
    s(f'''s_lshl_b32 s42, s38, 7
    s_add_u32 s42, s42, {XG}
    s_getreg_b32 s10, hwreg(HW_REG_XCC_ID, 0, 4)'''); base(s, 8, 32, 's42')
def xg_pub(s):
    s('''s_lshl_b32 s42, s39, 3
    v_mov_b32 v14, s34
    v_mov_b32 v15, s10
    v_mov_b32 v16, s42
    s_mov_b64 exec, 1
    global_store_dwordx2 v16, v[14:15], s[8:9] sc1
    s_mov_b64 exec, -1''')
def xg_issue(s): s('global_load_dwordx2 v[56:57], v58, s[8:9] sc1')
def xg_addr(s):
    s('''v_min_u32 v58, 6, v1
    v_lshlrev_b32 v58, 3, v58'''); xg_issue(s)
def xg_fin(s):
    s('''v_xor_b32 v56, s34, v56
    v_xor_b32 v57, s10, v57
    v_or_b32 v56, v56, v57
    v_cmp_ne_u32 vcc, 0, v56
    s_cmp_eq_u64 vcc, 0
    s_cselect_b64 s[4:5], -1, 0
    s_not_b64 s[6:7], s[4:5]''')
def colsum_pre(s, isB):
    s('''s_lshl_b32 s42, s50, 6
    v_and_b32 v12, 31, v1
    v_lshl_add_u32 v12, v12, 1, s42
    global_load_ushort v13, v12, s[22:23]''')
    s('''s_lshl_b32 s42, s39, 7
    v_and_b32 v12, 7, v1
    v_lshl_add_u32 v12, v12, 4, s42
    global_load_dwordx4 v[40:43], v12, s[26:27]''')
def colsum(s, isB):
    s('''v_mov_b32 v14, 0x3f803f80
    v_mov_b32 v16, 0
    v_mov_b32 v17, 0''')
    for i in range(112): s(f'v_dot2c_f32_bf16 v{16+(i&1)}, v{144+i}, v14')
    s('''v_add_f32 v16, v16, v17
    v_mov_b32 v17, v16
    v_permlane32_swap_b32 v16, v17
    v_add_f32 v16, v16, v17
    v_cvt_pk_bf16_f32 v9, v16, v16
    v_and_b32 v17, 0xffff0000, v9
    v_sub_f32 v16, v16, v17
    v_cvt_pk_bf16_f32 v10, v16, 0
    v_lshl_or_b32 v8, v13, 16, v13
    v_mov_b32 v11, 0
    v_mov_b32 v35, 0
    v_cmp_le_u32 vcc, 32, v1
    v_cndmask_b32 v32, 0, v8, vcc
    v_cndmask_b32 v33, 0, v9, vcc
    v_cndmask_b32 v34, 0, v10, vcc
    v_sub_u32 v8, v8, v32
    v_sub_u32 v9, v9, v33
    v_sub_u32 v10, v10, v34''')
def hg_addr(s):
    s(f"""v_lshrrev_b32 v12, 4, v0
    v_and_b32 v15, 15, v0
    v_lshlrev_b32 v2, 13, v12
    v_lshl_add_u32 v2, v15, 4, v2
    v_mul_u32_u24 v14, {HR}, v15
    v_lshl_add_u32 v3, v12, 2, v14
    v_add_u32 v3, {HB}, v3
    v_add_u32 v21, 128, v3
    v_mov_b32 v20, 0x3f803f80
    v_and_b32 v12, 31, v1
    v_lshrrev_b32 v15, 5, v1
    v_mul_u32_u24 v4, {HR}, v12
    v_lshl_add_u32 v4, v15, 4, v4
    v_add_u32 v4, {HB}, v4
    v_mul_u32_u24 v22, 80, v12
    v_lshl_add_u32 v22, v15, 5, v22
    s_lshl_b32 s42, s35, 2
    s_add_u32 s42, s42, {SB}
    v_add_u32 v22, s42, v22
    v_mul_u32_u24 v5, 80, v1
    v_add_u32 v5, {SB}, v5
    s_lshl_b32 s42, s38, 8
    s_add_u32 s42, s42, {HT}""")
    base(s, 56, 32, 's42')
    for i in range(1, 7): base(s, 56 + 2*i, 54 + 2*i, 64*4096)
def max_chain(s, d, a, n, hook=None):
    for i in range(0, n, 2):
        if hook and i % 4 == 0: s(hook(i // 4))
        s(f'v_max3_u32 {d}, {d}, v{a+i}, v{a+i+1}' if i else f'v_max_u32 {d}, v{a}, v{a+1}')
    s(f'v_cmp_eq_u32 vcc, -1, {d}')
def hg_issue(s):
    for i in range(7): s(f'global_load_dwordx4 {V(64+4*i,4)}, v2, s[{56+2*i}:{57+2*i}] sc1')
def hg_check(s):
    def hook(i):
        o = [f'ds_write2st64_b32 v{21 if i & 1 else 3}, v{64+4*i+t}, v{65+4*i+t} offset0:{57*t+(i>>1)} offset1:{57*t+57+(i>>1)}' for t in (0, 2)]
        for t in range(4):
            x = f'v{64+4*i+t}'
            o += [f'v_dot2c_f32_bf16 v{24+t}, {x}, v20', f'v_dot2c_f32_bf16 v{28+t}, {x}, {x}']
        return o
    s([f'v_mov_b32 v{24+i}, 0' for i in range(8)])
    max_chain(s, 'v12', 64, 28, hook)
def hg_stats(s):
    s([f'v_permlane32_swap_b32 v{24+t}, v{28+t}' for t in range(4)] + [f'v_add_f32 v{24+t}, v{24+t}, v{28+t}' for t in range(4)])
    s("""v_permlane16_swap_b32 v24, v25
    v_permlane16_swap_b32 v26, v27
    v_add_f32 v24, v24, v25
    v_add_f32 v26, v26, v27
    ds_write2st64_b32 v22, v24, v26 offset0:0 offset1:10""")
def retry(s, l, issue, check):
    def body(s): spin_begin(s, l); issue(s); check(s); spin_end(s, l)
    s.cond('s_cbranch_vccz', body)
def f12_addr(s):
    s(f"""s_lshr_b32 s42, s35, 1
    s_lshl_b32 s42, s42, 7
    s_add_u32 s42, s42, {F1}"""); base(s, 8, 32, 's42')
    s(f"""v_min_u32 v44, 6, v1
    v_lshlrev_b32 v44, 9, v44
    global_load_dword v45, v44, s[8:9] sc1
    s_lshl_b32 s42, s38, 7
    s_add_u32 s42, s42, {F2}"""); base(s, 6, 32, 's42')
PW, PBB = 4608, 126976
def w2_addr(s):
    s(f"""s_mul_i32 s42, s39, 229376
    s_mul_i32 s44, s35, 28672
    s_add_u32 s44, s44, s42
    s_add_u32 s44, s44, {W2S + 4096}""")
    base(s, 44, 32, 's44'); base(s, 46, 44, 8192); base(s, 48, 46, 8192); base(s, 52, 48, 4096)
def mlp_addr(s, isB):
    s(f"""s_mul_i32 s42, s38, 229376
    s_lshl_b32 s43, s35, 12
    s_add_u32 s10, s42, s43
    s_add_u32 s10, s10, {PART}
    s_and_b32 s13, s38, 3
    s_mul_i32 s13, s13, 229376
    s_add_u32 s13, s13, s43
    s_add_u32 s13, s13, {W1S}
    s_lshl_b32 s42, s39, 15
    s_add_u32 s42, s42, s10"""); base(s, 4, 32, 's42')
    s(f"""v_lshrrev_b32 v12, 5, v1
    v_and_b32 v14, 31, v1
    v_mul_u32_u24 v6, 576, v12
    v_lshl_add_u32 v6, v14, 4, v6
    s_mul_i32 s11, s35, {PW}
    s_add_u32 s12, s11, {PBB - 4*PW if isB else 8*PW}
    v_add_u32 v6, s11, v6
    v_bfe_u32 v12, v0, 3, 5
    v_and_b32 v14, 7, v0
    v_mul_u32_u24 v39, 576, v14
    v_and_b32 v15, 31, v12
    v_lshl_add_u32 v39, v15, 4, v39
    s_lshl_b32 s42, s39, 7
    s_add_u32 s42, s42, {HB}
    v_mul_u32_u24 v7, {HR}, v12
    v_lshl_add_u32 v7, v14, 4, v7
    v_add_u32 v7, s42, v7""")
def gx_addr():
    o = []
    for r in range(1, 7):
        o += [L(f"""s_add_u32 s42, s39, {r}
        s_cmp_ge_u32 s42, 7
        s_cselect_b32 s43, 7, 0
        s_sub_u32 s42, s42, s43"""), L(f"""s_lshl_b32 s42, s42, 15
        s_add_u32 s42, s42, {'s13' if 'gx' in AB else 's10'}
        s_add_u32 s{54+2*r}, s32, s42
        s_addc_u32 s{55+2*r}, s33, 0""")]
    o += [L("""s_mul_i32 s42, s38, 57344
    s_lshl_b32 s43, s39, 7
    s_add_u32 s42, s42, s43
    s_add_u32 s68, s28, s42
    s_addc_u32 s69, s29, 0""")]
    return o
def out_addr():
    return L("""v_bfe_u32 v8, v0, 3, 5
    v_and_b32 v9, 15, v8
    v_lshrrev_b32 v8, 4, v8
    v_lshl_add_u32 v8, v9, 2, v8
    v_and_b32 v9, 7, v0
    v_mul_u32_u24 v3, 896, v8
    v_lshl_add_u32 v3, v9, 4, v3""")
def w2reg(n): return 96 + 4*n
def w2ld(n, isB, dma=False, va='v2'):
    b = [44, 46, 48, 52][n >> 3]; o = (n & 7) + 4*(n >= 24)
    if dma: return ([f's_mov_b32 m0, s{11+(n>=24)}'] if n % 4 == 0 else []) + [f'global_load_lds_dwordx4 {va}, s[{b}:{b+1}] offset:{1024*o-4096} sc1']
    return f'global_load_dwordx4 {V(w2reg(n),4)}, {va}, s[{b}:{b+1}] offset:{1024*o-4096} sc1'
def g1():
    rd = lambda n: [f'ds_read_b128 {V(48+4*(n%4),4)}, v4 offset:{(n//28)*32*HR+32*(n%28)}']
    pre = rd(0) + rd(1) + rd(2); it = []
    for n in range(56):
        k = n % 28; acc = V(64 + 16*(n // 28), 16)
        it.append((rd(n + 3) if n + 3 < 56 else []) + [f'v_mfma_f32_32x32x16_bf16 {acc}, {V(144+4*k,4)}, {V(48+4*(n%4),4)}, {acc if k else 0}'])
    return pre, it
def addto(it, fill, a, b):
    for i, f in enumerate(fill): it[a + i * (b - a) // len(fill)].append(f)
K0 = -2 * math.sqrt(2 / math.pi) * LOG2E
def stats_fin():
    o = []
    for st in (4, 2): o += [f'v_add_f32 v{k+i}, v{k+i}, v{k+i+st}' for i in range(st) for k in (16, 24)]
    o += ['v_add_f32 v16, v16, v17', 'v_add_f32 v17, v24, v25']
    m, q, a, b, c, d = range(16, 22); cs = 36
    r = lambda x, y: [f'v_cvt_pk_bf16_f32 v{x}, v{y}, v{y}', f'v_and_b32 v{x}, 0xffff0000, v{x}']
    o += [f'v_mul_f32 v{b}, {fb(-1/448)}, v{m}', f'v_mul_f32 v{q}, {fb(1/448)}, v{q}', f'v_fma_f32 v{q}, -v{b}, v{b}, v{q}', f'v_max_f32 v{q}, 0, v{q}']
    o += [f'v_add_f32 v{a}, {fb(1e-5)}, v{q}', f'v_sqrt_f32 v{a}, v{a}'] + r(d, b) + r(a, a)
    o += [f'v_rcp_f32 v{c}, v{a}', f'v_sub_f32 v{m}, v{b}, v{d}', f'v_mul_f32 v{q}, v{q}, v{c}', f'v_cvt_pk_bf16_f32 v13, v{d}, v{m}', f'v_mul_f32 v{q}, v{q}, v{c}']
    o += r(q, q) + [f'v_add_f32 v{q}, {fb(1e-5)}, v{q}', f'v_sqrt_f32 v{q}, v{q}', f'v_lshrrev_b32 v14, 16, v{d}'] + r(q, q)
    o += [f'v_mul_f32 v{cs}, v{a}, v{q}', f'v_rcp_f32 v{c}, v{cs}'] + r(a, cs)
    o += [f'v_sub_f32 v{q}, v{cs}, v{a}', f'v_mul_f32 v{cs+1}, {fb(K0)}, v{c}', f'v_cvt_pk_bf16_f32 v12, v{a}, v{q}', 'v_mov_b32 v15, 0',
          f'v_mul_f32 v{c}, v{c}, v{c}', f'v_mul_f32 v{c}, {fb(0.044715)}, v{c}', f'v_mul_f32 v{cs+2}, v{c}, v{cs+1}']
    o += [f'v_mov_b32 v{44+i}, v{36+i}' for i in range(3)] + [f'v_permlane32_swap_b32 v{36+i}, v{44+i}' for i in range(3)]
    return o
def gelu(acc, cs, half):
    o = []
    for u in range(4):
        T = lambda i: 16 + 4*(u & 1) + i
        for f in (lambda i: f'v_mul_f32 v{T(i)}, v{acc+4*u+i}, v{acc+4*u+i}', lambda i: f'v_fma_f32 v{T(i)}, v{T(i)}, v{cs+2}, v{cs+1}',
                  lambda i: f'v_mul_f32 v{T(i)}, v{T(i)}, v{acc+4*u+i}', lambda i: f'v_exp_f32 v{T(i)}, v{T(i)}',
                  lambda i: f'v_fma_f32 v{T(i)}, v{T(i)}, v{cs}, v{cs}', lambda i: f'v_rcp_f32 v{T(i)}, v{T(i)}',
                  lambda i: f'v_mul_f32 v{T(i)}, v{T(i)}, v{acc+4*u+i}'):
            o += [f(i) for i in range(0 if 'ge' in AB else 4)]
        g = 48 if half else 24
        o += [f'v_cvt_pk_bf16_f32 v{g+2*u}, v{T(0)}, v{T(1)}', f'v_cvt_pk_bf16_f32 v{g+1+2*u}, v{T(2)}, v{T(3)}']
        if u & 1: o.append(f'global_store_dwordx4 v2, {V(g-2+2*u,4)}, s[4:5] offset:{(u>>1)*1024+half*2048} sc1')
    if O['pf']: o += ['v_lshlrev_b32 v16, 5, v1', f'global_load_dword v10, v16, s[4:5] offset:{half*2048} sc1']
    return o
def gld(h, g): return [f'global_load_dwordx4 {V(200+8*r+4*x,4)}, v2, s[{54+2*r}:{55+2*r}] offset:{2048*h+1024*x} sc1' for r in range(1+3*g, 4+3*g) for x in range(2)]
class Rec(list):
    def __call__(s, t): s.extend(L(t) if isinstance(t, str) else t)
def gchk(g):
    r = Rec(); max_chain(r, 'v11', 208 + 24*g, 24); return list(r)
def g2(s, h, X, bar, c1, ex=[], e0=0):
    it = []
    for n in range(28):
        r, x, e = n >> 2, (n >> 1) & 1, n & 1; acc = V(64 + 16*e, 16)
        it.append([f'v_mfma_f32_32x32x16_bf16 {acc}, {V(w2reg(n),4)}, {V((200+8*r if r else 48 if h else 24)+4*x,4)}, {acc if n > 1 else 0}'])
    if bar is not None: it[bar].append(lambda s: s.barrier(keep=True))
    rt = lambda g: retry(s, f'Lg{h}{g}{X}', lambda s: s(gld(h, g) + ([f's_add_u32 s72, s72, {10000 << (4*h)}'] if gen1.STAMP else [])), lambda s: s(gchk(g)))
    s(weave(it[:4], gchk(0), 1)); rt(0); stamp(s, 30 + 2*h); s(weave(it[4:16], gchk(1), c1)); rt(1); stamp(s, 31 + 2*h); s(weave(it[16:], ex, e0))
def dump(off):
    o = []
    for q in range(4):
        o += [f'v_cvt_pk_bf16_f32 v{16+4*q+i}, v{64+8*q+2*i}, v{65+8*q+2*i}' for i in range(4)] + [f'ds_write_b128 v6, {V(16+4*q,4)} offset:{off+1152*q}']
    return o
def unp(d, a): return [f'v_lshlrev_b32 v{d}, 16, v{a}', f'v_and_b32 v{d+1}, 0xffff0000, v{a}']
def accum(s, regs, pk=False):
    for a in regs:
        for k in range(4):
            t = 84 + 2*(k & 1); s(unp(t, a + k) + ([f'v_pk_add_f32 {V(64+2*k,2)}, {V(64+2*k,2)}, {V(t,2)}'] if pk or O['pk'] else [f'v_add_f32 v{64+2*k+i}, v{64+2*k+i}, v{t+i}' for i in range(2)]))
def fin_init(s, h):
    s(f'ds_read_b128 v[80:83], v7 offset:{32*HR*h}')
    for k in range(4): s(unp(64 + 2*k, 40 + k))
def fin_out(s, h):
    for k in range(4): s(f'v_cvt_pk_bf16_f32 v{88+k}, v{64+2*k}, v{65+2*k}')
    s(f'global_store_dwordx4 v3, v[88:91], s[68:69] offset:{1792*h} sc1')
PR = [16, 20, 24, 28, 32, 12, 72, 76]
def mlp(s, isB, O):
    X = 'B' if isB else 'A'; nw = 28
    s('v_lshlrev_b32 v2, 4, v1'); s('global_load_dword v47, v11, s[6:7] sc1'); s([w2ld(n, isB) for n in range(O['lp'], O['l0'])])
    s.barrier(); stamp(s, 8)
    pre, it = g1(); P = lambda k: O[k + X]
    prio = lambda k: s(f's_setprio {P("p") >> (4*k) & 3}')
    ld = [w2ld(n, isB) for n in range(nw)]; l0 = O['l0']; l2 = P('l2'); g0 = P('g0'); gp = P('gp')
    ext = lambda acc, a: f'v_mfma_f32_32x32x16_bf16 {V(acc,16)}, {V(a,4)}, v[12:15], {V(acc,16)}'
    prio(0); s(pre + [f'ds_read_b128 {V(16+4*i,4)}, v5 offset:{16*i}' for i in range(4)])
    if O['dma']:
        addto(it, ld[l0:12] + [w2ld(n, isB, True) for n in range(20, 28)], 0, 28); ld = ld[:20]; l2 = min(l2, 20)
        it[30] += ['v_add_u32 v8, s11, v2', 'v_add_u32 v9, s12, v2']; it[43].append(lambda s: s.touch('dma'))
        addto(it, [f'ds_read_b128 {V(w2reg(n),4)}, v{8+(n>=24)} offset:{1024*(n&3)}' for n in range(20, 28)], 44, 52)
    else: addto(it, ld[l0:12], 0, 28)
    addto(it, ld[12:l2], 28, P('le')); addto(it, gx_addr(), 40, 56)
    s(weave(it[:28], stats_fin(), P('s0'), P('s1'))); s(ext(64, 8)); stamp(s, 9); prio(1)
    s('v_cmp_ne_u32 vcc, s34, v47')
    retry(s, 'Lf2' + X, lambda s: s('global_load_dword v47, v11, s[6:7] sc1'), lambda s: s('v_cmp_ne_u32 vcc, s34, v47'))
    ge = gelu(64, 36, 0); s(it[28:28+g0]); s(ge[:gp]); prio(2); s(weave(it[28+g0:], ge[gp:], 0, P('gw')))
    s(ext(80, 32)); prio(3); stamp(s, 10); s(out_addr())
    ge = weave(gelu(80, 44, 1), ld[l2:], 0, 40); ga = P('ga')
    s(weave(ge, [lambda s: stamp(s, 34)] + gld(0, 0) + gld(0, 1), ga, P('gb'))); stamp(s, 11); prio(4)
    gb = gld(1, 0) + gld(1, 1); eb = P('eb')
    g2(s, 0, X, None, O['c1'], gb[:eb], O['e0']); prio(5); stamp(s, 12)
    e2 = P('e2'); s(weave(dump(0), gb[eb:e2], 0, P('dw')))
    if O['fin'] and isB:
        s(gb[e2:]); prio(6); g2(s, 1, X, O['b9'], O['c1']); stamp(s, 13); s(f'v_add_u32 v6, {PBB - 4*PW}, v6'); s(dump(0)); stamp(s, 14); s.barrier()
    elif O['fin']:
        s(gb[e2:]); prio(6); g2(s, 1, X, None, O['c1']); prio(7); s(dump(8*PW)); stamp(s, 13); s.barrier()
        s([f'ds_read_b128 {V(PR[i],4)}, v39 offset:{PW*i}' for i in range(8)]); fin_init(s, 0); accum(s, PR[:4])
        s([f'ds_read_b128 {V(PR[i],4)}, v39 offset:{PW*(8+i)}' for i in range(4)]); accum(s, PR[4:] + [80]); fin_out(s, 0)
        fin_init(s, 1); s(f'v_add_u32 v39, {PBB}, v39'); accum(s, PR[:4] + [80])
        s.barrier(); stamp(s, 14)
        s([f'ds_read_b128 {V(PR[i],4)}, v39 offset:{PW*i}' for i in range(4)]); accum(s, PR[:4], True); fin_out(s, 1)
    elif isB:
        fin_init(s, 0); accum(s, [80]); s.barrier(keep=True)
        s([f'ds_read_b128 {V(PR[i],4)}, v39 offset:{PW*i}' for i in range(8)])
        r = Rec(); accum(r, PR); s(weave(list(r), gb[e2:], O['f2'], O['f3'])); fin_out(s, 0); prio(6)
        g2(s, 1, X, O['b9b'], O['c1']); stamp(s, 13); s(f'v_add_u32 v6, {PBB - 4*PW}, v6'); s(dump(0)); stamp(s, 14); s.barrier()
    else:
        s(gb[e2:]); prio(6); g2(s, 1, X, O['b9a'], O['c1']); prio(7); s(dump(8*PW)); fin_init(s, 1); accum(s, [80]); stamp(s, 13); s.barrier()
        s([f'ds_read_b128 {V(PR[i],4)}, v39 offset:{PW*(8+i)}' for i in range(4)]); s(f'v_add_u32 v39, {PBB}, v39'); accum(s, PR[:4])
        s.barrier(); stamp(s, 14)
        s([f'ds_read_b128 {V(PR[i],4)}, v39 offset:{PW*i}' for i in range(4)]); accum(s, PR[:4], True); fin_out(s, 1)
def pub_flag(s, off, vm=0):
    def f(s):
        s(f'''s_lshl_b32 s42, s2, 7
        s_add_u32 s42, s42, {off}'''); base(s, 52, 32, 's42')
        s('''v_mov_b32 v2, 0
        v_mov_b32 v3, s34
        s_mov_b64 exec, 1
        global_store_dword v2, v3, s[52:53] sc1
        s_mov_b64 exec, -1''')
    s.wait(vm=vm); s.barrier(); s('s_cmp_lg_u32 s35, 0'); s.cond('s_cbranch_scc1', f)
def helper(s, on, O):
    s('''s_min_u32 s50, s2, 27
    s_mul_i32 s42, s50, 57344''')
    base(s, 52, 24, 's42')
    s('''v_lshrrev_b32 v2, 3, v0
    v_and_b32 v3, 7, v0
    v_mul_u32_u24 v4, 896, v2
    v_lshl_add_u32 v4, v3, 4, v4
    v_mul_u32_u24 v5, 928, v2
    v_lshl_add_u32 v5, v3, 4, v5''')
    xt_addr(s); mktag(s); on(s, 7, xt_finish, True); on(s, 7, st_finish); stamp(s, 4)
    if O['cp']: code_prefetch(s)
    for i in range(7): s(f'global_load_dwordx4 {V(96+4*i,4)}, v4, s[52:53] offset:{128*i}')
    s(f'''s_mul_i32 s42, s2, 229376
    s_add_u32 s42, s42, {PART}'''); base(s, 58, 32, 's42')
    s([f'v_mov_b32 v{60+i}, -1' for i in range(4)])
    def hp(n):
        for i in range(n): s('global_store_dwordx4 v13, v[60:63], s[58:59] sc1'); base(s, 58, 58, 8192)
    hp(O['hp'])
    def w2(s):
        s('''s_and_b32 s42, s35, 1
        s_lshr_b32 s43, s35, 1
        s_lshl_b32 s44, s2, 1
        s_add_u32 s44, s44, s42
        s_lshr_b32 s45, s44, 3
        s_and_b32 s44, s44, 7
        s_mul_i32 s46, s42, 29696
        v_lshrrev_b32 v2, 5, v1
        v_bfe_u32 v3, v1, 2, 2
        v_lshl_add_u32 v2, v2, 2, v3
        v_mul_u32_u24 v2, 928, v2
        v_bfe_u32 v3, v1, 4, 1
        v_lshl_add_u32 v2, v3, 5, v2
        v_and_b32 v3, 1, v1
        v_lshl_add_u32 v2, v3, 4, v2
        v_bfe_u32 v3, v1, 1, 1
        v_lshl_add_u32 v2, v3, 3, v2''')
        s(f"""s_lshr_b32 s47, s43, 1
        s_mul_i32 s47, s47, {16*928}
        s_and_b32 s48, s43, 1
        s_lshl_b32 s48, s48, 6
        s_add_u32 s47, s47, s48
        s_add_u32 s47, s47, s46
        v_add_u32 v7, s47, v2
        s_mul_i32 s47, s44, 28672
        s_lshl_b32 s48, s43, 10
        s_add_u32 s47, s47, s48
        s_add_u32 s47, s47, {W2S}
        v_lshlrev_b32 v3, 4, v1""")
        for i in range(7): s(f'ds_write_b128 v5, {V(96+4*i,4)} offset:{128*i}')
        s.barrier()
        for i in range(7):
            s(f'ds_read_b64_tr_b16 {V(128+4*i,2)}, v7 offset:{128*i}'); s(f'ds_read_b64_tr_b16 {V(130+4*i,2)}, v7 offset:{128*i+8*928}')
        for i in range(7):
            s(f"""s_cmp_lt_u32 s45, {i}
            s_cselect_b32 s42, 7, 0
            s_add_u32 s42, s42, s45
            s_lshl_b32 s42, s42, 12
            s_add_u32 s42, s42, s47
            s_add_u32 s42, s42, {i*(229376-4096)}"""); base(s, 52 + 2*(i & 1), 32, 's42')
            s(f'global_store_dwordx4 v3, {V(128+4*i,4)}, s[{52+2*(i&1)}:{53+2*(i&1)}] sc1')
    s('s_cmp_ge_u32 s2, 28'); s.cond('s_cbranch_scc1', w2)
    stamp(s, 1); hp(4); pub_flag(s, F1, 4); stamp(s, 2)
    s(f's_mov_b32 s55, {O["npf"] - 4 - O["hp"]}'); s.label('Lpf'); hp(1)
    s('''s_sub_u32 s55, s55, 1
    s_cmp_lg_u32 s55, 0
    s_cbranch_scc1 Lpf''')
    pub_flag(s, F2); stamp(s, 3)
```

```python
import sys
from gen2 import *
NAME = 'sequential_preLN__ssm_conv_s4d__mixer_channel_mlp__prompt'
DBGW = None; ENC = None; NE = 0
def dump_stamps(s):
    if not gen1.STAMP: return
    stamp(s, 15)
    s('s_mov_b32 s48, 0')
    if DBGW is not None:
        def dd(s):
            for i in range(1, 16): s(f's_sub_u32 s42, s{70+2*i}, s70'); s(f'v_mov_b32 v{15+i}, s42')
            s('v_mov_b32 v31, s48'); s('v_mov_b32 v2, 0'); s('s_mov_b64 exec, 1')
            for i in range(4): s(f'global_store_dwordx4 v2, {V(16+4*i,4)}, s[30:31] offset:{16*i}')
            s('s_mov_b64 exec, -1')
            if ENC is not None:
                global NE; NE += 1
                s(f's_sub_u32 s42, s{70+2*ENC}, s70'); s('s_add_u32 s42, s42, 5000'); s.label(f'Lenc{NE}')
                s(f'''s_memrealtime s[44:45]
                s_sub_u32 s44, s44, s70
                s_cmp_lt_u32 s44, s42
                s_cbranch_scc1 Lenc{NE}''')
        s(f'''s_lshl_b32 s42, s2, 3
        s_add_u32 s42, s42, s35
        s_cmp_eq_u32 s42, {DBGW}'''); s.cond('s_cbranch_scc0', dd)
    s('''s_lshl_b32 s42, s2, 3
    s_add_u32 s42, s42, s35
    s_lshl_b32 s42, s42, 6''')
    s(f's_add_u32 s42, s42, {DBG}'); base(s, 46, 32, 's42'); s('v_mov_b32 v2, 0')
    for i in range(16): s(f'v_mov_b32 v{16+i}, s{70+2*i}')
    s('s_mov_b64 exec, 1')
    for i in range(4): s(f'global_store_dwordx4 v2, {V(16+4*i,4)}, s[46:47] offset:{16*i}')
O.update(ug=2, xo=1, na=28, f0=40, f1=130, l0=0, lp=6, dma=1, leA=40, leB=40, l2A=28, l2B=28, g0A=1, g0B=1, gpA=200, gpB=200, gwA=4, gwB=4, gaA=121, gbA=122, gaB=121, gbB=122, c1=6, ebA=0, ebB=0, e0=0, dwA=20, dwB=20, b9a=3, b9b=15, e2A=12, e2B=0, f2=0, f3=60, pk=0, fin=0, b9=3, pf=0,
  s0A=2, s1A=26, s0B=0, s1B=2, pA=0x01010101, pB=0x01010100, t4=1, n7=50, n8=28, nb=0, hp=8, cp=0, npf=28)
def tail(s, isB, rest):
    X = 'B' if isB else 'A'
    s.barrier(); stamp(s, 5)
    epilogue2(s); n0 = len(s.vm); s(rest); colsum_pre(s, isB); w2_addr(s)
    if O['lp']:
        s('v_lshlrev_b32 v23, 4, v1'); n1 = len(s.vm); flag_wait(s, 8, 'Lf1' + X); n0 -= n1 - len([x for x in s.vm if id(x) not in s.opt])
        s([w2ld(n, isB, va='v23') for n in range(O['lp'])]); hg_addr(s)
    else: hg_addr(s)
    if O.get('ps'): xg_addr(s)
    s.wait(vm=len(s.vm) - 1 - max(i for i, x in enumerate(s.vm) if x.k == 'vms')); stamp(s, 6)
    hg_issue(s); colsum(s, isB); mlp_addr(s, isB); hg_check(s); retry(s, 'Lhg' + X, hg_issue, hg_check); hg_stats(s)
    if not O['lp']: flag_wait(s, 8, 'Lf1' + X)
    stamp(s, 7)
    if O.get('ps'): xg_fin(s)
    if not isB:
        def ep(s):
            s('''s_xor_b32 s42, s34, 0x5bd1e995
            s_add_u32 s42, s42, 1
            v_mov_b32 v12, 0
            v_mov_b32 v13, s42
            s_mov_b64 exec, 1
            global_store_dword v12, v13, s[32:33] sc1
            s_mov_b64 exec, -1''')
        s('''s_or_b32 s42, s36, s35
        s_cmp_eq_u32 s42, 0'''); s.cond('s_cbranch_scc0', ep)
    mlp(s, isB, O); dump_stamps(s); s('s_endpgm')
def build():
    O['l0'] = max(O['l0'], O['lp'])
    p = S(); prologue(p)
    def on(s, w, f, ne=False): s(f's_cmp_eq_u32 s35, {w}'); s.cond('s_cbranch_scc1' if ne else 's_cbranch_scc0', f, (w, ne))
    on(p, 7, st_issue)
    if O.get('pt'): on(p, 6, pretouch)
    p('''s_cmp_lt_u32 s2, 32
    s_cbranch_scc1 Lhelper''')
    h = p.fork()
    on(p, 7, w1_issue, True)
    if O.get('early'):
        for n in range(5, -1, -1): p(f's_waitcnt vmcnt({n})'); stamp(p, 46 - n)
        p.wait(lg=0); stamp(p, 47)
    stamp(p, 21); xt_addr(p); w1_unit(p); exp_addr(p); stamp(p, 22); mktag(p)
    def pub(s): xt_finish(s); w1_unit2(s)
    def stf(s): s('s_setprio 3'); st_finish(s); s('s_setprio 0'); st_prefill(s)
    on(p, 7, pub, True); on(p, 7, stf); stamp(p, 1)
    if O.get('early'):
        for n in range(2, -1, -1): p(f's_waitcnt vmcnt({n})'); stamp(p, 50 - n)
    p('''s_cmp_ge_u32 s35, 4
    s_cbranch_scc1 LB''')
    a = p.fork(); b = p.fork()
    s = a
    kg_setup(s, False); stamp(s, 24); kg_lo(s, lambda s: 0); stamp(s, 25); kg_mfma(s); w1_flag(s); stamp(s, 26); s.barrier(); stamp(s, 2)
    kg_mfma2(s)
    if O.get('ps'): xg_base(s); on(s, 0, xg_pub)
    s.barrier(); stamp(s, 3)
    expand(s); stamp(s, 27); conv_addr(s); w1_addr(s); epilogue(s); stamp(s, 28); s.barrier(); stamp(s, 4)
    wl = w1_loads(); na = O['na'] + 1
    conv(s, [lambda s: flag_wait(s, 52, 'Lw1A')] + wl[:na] + [f12_addr], O['f0'], O['f1']); stamp(s, 29); tail(s, False, wl[na:])
    s = b; s.label('LB')
    kg_setup(s, True); stamp(s, 24); kg_hi(s, lambda s: 0); stamp(s, 25); ug_addr(s); stamp(s, 26); s.barrier(); stamp(s, 2)
    if O['ug'] == 0: ug_issue(s)
    if O.get('ps'): xg_base(s)
    zero_pads(s); w1_flag(s, 8 if O['ug'] == 0 else 0); w1_addr(s); wl = w1_loads('v43'); nb = O['nb']
    if nb: flag_wait(s, 52, 'Lw1B'); s(wl[:nb + 1])
    s.barrier(); stamp(s, 3)
    if O['ug'] == 1: ug_issue(s)
    expand(s); stamp(s, 27)
    if O['ug'] == 2: ug_issue(s)
    ug_check(s); retry(s, 'Lug', ug_issue, ug_check)
    stamp(s, 28); ubuild(s); s.barrier(); stamp(s, 4)
    if not nb: flag_wait(s, 52, 'Lw1B')
    flag_hf(s, 46); s(wl[nb + 1:] if nb else wl)
    vbuild(s); epilogue(s); flag_wait(s, 46, 'Lhf'); f12_addr(s); stamp(s, 29)
    tail(s, True, [])
    h.label('Lhelper'); helper(h, on, O); dump_stamps(h); h('s_endpgm')
    ref = open(f'cdna_kernels/{NAME}.s.ref').read().split('\n')
    hdr = [l for l in ref if l.startswith(';') and '@launch' not in l]
    o = hdr + [f'; @launch grid=(256,1,1) block=(512,1,1) lds={LDS}', '.amdgcn_target "amdgcn-amd-amdhsa--gfx950"', '.text',
        f'.globl {NAME}_kernel', '.p2align 8', f'.type {NAME}_kernel,@function', f'{NAME}_kernel:']
    o += p.out + a.out + b.out + h.out + ['Lend:', '  s_endpgm', '']
    o += ref[ref.index('.section .rodata,"a"'):]
    print('nops', a.nn, b.nn, h.nn, 'lines', len(a.out), len(b.out), len(h.out), file=sys.stderr)
    t = '\n'.join(o)
    import subprocess
    open('_t.s', 'w').write(t.replace('CODESZ', '0x1234'))
    subprocess.check_call('clang -x assembler -target amdgcn-amd-amdhsa -mcpu=gfx950 -c _t.s -o _t.o', shell=True)
    sz = [int(l.split()[2], 16) for l in subprocess.check_output('llvm-objdump -h _t.o', shell=True, text=True).split('\n') if ' .text ' in l][0]
    print('code', sz, file=sys.stderr)
    return t.replace('CODESZ', str(sz - 128))
if __name__ == '__main__':
    gen1.STAMP = 'stamp' in sys.argv
    if 'cyc' in sys.argv: gen1.CLK = 's_memtime'
    for a in sys.argv:
        if a.startswith('dbg='): DBGW = int(a[4:])
        if a.startswith('o:'): k, v = a[2:].split('='); O[k] = int(v, 0)
        if a.startswith('ab='): AB.update(a[3:].split(','))
        if a.startswith('enc='): ENC = int(a[4:])
        if a.startswith('sel='): gen1.SEL[:] = [int(x) for x in a[4:].split(',')]
    open(sys.argv[1], 'w').write(build())
```

```python
from dsl import *
import struct, math
def fb(x): return hex(struct.unpack('<I', struct.pack('<f', x))[0])
def V(a, n): return f'v[{a}:{a+n-1}]'
W1F, F1, STATS, XT, W1S, W2S, HT, PART, DBG = 4096, 32768, 65536, 131072, 0x400000, 0x600000, 0x800000, 0xA00000, 0x2000000
F2 = F1 + 4096
GS, ROW, HI = 30208, 528, 16896
RB, RCH, RCP = 120832, 8320, 4160
UB, UCH = 137472, 4576
YB, VB = 0, 40960
HB, HR = 61440, 912
GB, OB, SB = 0, 32768, 120832
LDS = 154880
SPIN = 20000
LOG2E = 1.4426950408889634
TAG = 's34'; W = 's35'; C = 's37'; TILE = 's38'; J = 's39'
def base(s, d, src, off):
    s(f's_add_u32 s{d}, s{src}, {off}'); s(f's_addc_u32 s{d+1}, s{src+1}, 0')
O = {}
STAMP = False
CLK = 's_memrealtime'
SEL = list(range(16))
def stamp(s, n):
    if STAMP and n in SEL:
        n = SEL.index(n); s(f'{CLK} s[{70+2*n}:{71+2*n}]')
def prologue(s):
    c = O['cp']
    if c >= 2:
        s('s_getpc_b64 s[68:69]')
        if c & 4: s('s_cmp_ge_u32 s2, 32'); s('s_cbranch_scc1 Lnopf')
        s(f'v_lshlrev_b32 v11, {6 if c & 1 else 7}, v0'); s('v_min_u32 v11, CODESZ, v11')
        s.raw('  global_load_dword v255, v11, s[68:69]')
        if c & 4: s.label('Lnopf')
    s('''s_load_dwordx16 s[4:19], s[0:1], 0
    s_load_dwordx2 s[32:33], s[0:1], 112
    s_load_dwordx8 s[20:27], s[0:1], 64
    s_load_dwordx4 s[28:31], s[0:1], 96
    s_getpc_b64 s[68:69]
    s_cmp_ge_u32 s2, 256
    s_cbranch_scc1 Lend''')
    stamp(s, 0)
    s('''v_lshrrev_b32 v11, 6, v0
    v_and_b32 v1, 63, v0
    v_readfirstlane_b32 s35, v11
    s_sub_u32 s36, s2, 32
    s_cselect_b32 s42, 0, s36
    s_lshr_b32 s43, s42, 3
    s_and_b32 s42, s42, 7
    s_mul_i32 s37, s42, 28
    s_add_u32 s37, s37, s43
    ''')
    if O.get('t4'): s('''s_lshr_b32 s39, s43, 2
    s_and_b32 s43, s43, 3
    s_lshl_b32 s42, s42, 2
    s_add_u32 s38, s42, s43''')
    else: s('''s_and_b32 s38, s42, 1
    s_mul_i32 s38, s38, 28
    s_add_u32 s43, s43, s38
    s_lshr_b32 s39, s43, 3
    s_and_b32 s43, s43, 7
    s_and_b32 s42, s42, 6
    s_lshl_b32 s42, s42, 2
    s_add_u32 s38, s42, s43''')
    s('''    s_lshl_b32 s42, s37, 10
    v_and_b32 v28, 255, v0
    v_lshl_add_u32 v28, v28, 2, s42
    s_lshl_b32 s49, s37, 2
    s_mul_i32 s3, s2, 7168
    s_cmp_eq_u32 s35, 7
    s_cselect_b32 s42, 0, s35
    s_lshl_b32 s42, s42, 7
    s_add_u32 s46, s42, s3
    v_lshrrev_b32 v15, 3, v1
    v_and_b32 v14, 7, v1
    v_mul_u32_u24 v12, 896, v15
    v_lshl_add_u32 v12, v14, 4, v12
    v_and_b32 v11, 3, v0
    v_lshrrev_b32 v16, 2, v0
    v_mul_u32_u24 v18, 3584, v16
    v_lshl_add_u32 v18, v11, 4, v18
    s_lshr_b32 s50, s37, 3
    s_lshl_b32 s50, s50, 1
    s_and_b32 s42, s37, 1
    s_add_u32 s50, s50, s42
    s_bfe_u32 s51, s37, 0x20001
    s_mul_i32 s48, s51, 401408
    s_lshl_b32 s43, s50, 6
    s_add_u32 s48, s48, s43
    v_lshlrev_b32 v13, 4, v0''')
    s.wait(lg=0); stamp(s, 39)
    base(s, 44, 4, 's46')
    if O.get('xo'):
        s("""global_load_dwordx4 v[64:67], v12, s[44:45]
        s_load_dword s34, s[32:33], 0
        s_load_dword s40, s[14:15], s49
        global_load_dword v29, v28, s[6:7]
        global_load_dword v30, v28, s[8:9]""")
    else:
        s("""global_load_dword v29, v28, s[6:7]
        global_load_dword v30, v28, s[8:9]
        s_load_dword s40, s[14:15], s49
        s_load_dword s34, s[32:33], 0
        global_load_dwordx4 v[64:67], v12, s[44:45]""")
    s("""global_load_dword v31, v28, s[10:11]
    global_load_dword v32, v28, s[12:13]
    s_load_dword s41, s[16:17], s49""")
def pretouch(s):
    s("""v_min_u32 v11, 4, v1
    v_lshlrev_b32 v11, 21, v11
    v_add_u32 v11, 0x1f0000, v11
    v_cmp_eq_u32 vcc, 0, v1
    v_mov_b32 v16, 0xc000
    v_cndmask_b32 v11, v11, v16, vcc
    global_load_dword v254, v11, s[32:33]""")
def code_prefetch(s):
    s('''v_lshlrev_b32 v11, 7, v0
    v_min_u32 v11, CODESZ, v11
    global_load_dword v255, v11, s[68:69]''')
def mktag(s): s('s_xor_b32 s34, s34, 0x5bd1e995')
XS = RB + 8192
def xt_addr(s):
    s('s_lshl_b32 s42, s3, 1'); s(f's_add_u32 s42, s42, {XT+3584}'); base(s, 46, 32, 's42')
    s(f'''s_mul_i32 s42, s35, 1280
    s_add_u32 s42, s42, {XS}
    v_mul_u32_u24 v15, 160, v15
    v_lshl_add_u32 v14, v14, 4, v15
    v_add_u32 v14, s42, v14
    v_and_b32 v15, 3, v1
    v_mul_u32_u24 v15, 320, v15
    v_lshrrev_b32 v16, 2, v1
    v_lshl_add_u32 v15, v16, 3, v15
    v_add_u32 v15, s42, v15''')
def xt_finish(s):
    s('''ds_write_b128 v14, v[64:67]
    ds_read_b32 v20, v15
    ds_read_b32 v22, v15 offset:160
    ds_read_b32 v24, v15 offset:4
    ds_read_b32 v26, v15 offset:164
    v_mov_b32 v21, s34
    v_mov_b32 v23, s34
    v_mov_b32 v25, s34
    v_mov_b32 v27, s34
    global_store_dwordx4 v13, v[20:23], s[46:47] offset:-3584 sc1
    global_store_dwordx4 v13, v[24:27], s[46:47] offset:3584 sc1''')
def st_issue(s):
    for i in range(1, 7): s(f'global_load_dwordx4 {V(64+4*i,4)}, v12, s[44:45] offset:{128*i}')
def st_prefill(s):
    s('s_lshl_b32 s42, s37, 13'); s(f's_add_u32 s42, s42, {HT+4096}'); base(s, 52, 32, 's42')
    s('v_lshlrev_b32 v17, 4, v1'); s([f'v_mov_b32 v{20+i}, -1' for i in range(4)])
    for i in range(8): s(f'global_store_dwordx4 v17, v[20:23], s[52:53] offset:{1024*i-4096} sc1')
def bf16r(s, d, a):
    s(f'v_cvt_pk_bf16_f32 {d}, {a}, {a}'); s(f'v_and_b32 {d}, 0xffff0000, {d}')
def st_finish(s):
    s('''v_mov_b32 v14, 0x3f803f80
    v_mov_b32 v16, 0
    v_mov_b32 v17, 0
    v_mov_b32 v18, 0
    v_mov_b32 v19, 0''')
    for i in range(28):
        s(f'v_dot2c_f32_bf16 v{16+(i&1)}, v{64+i}, v14'); s(f'v_dot2c_f32_bf16 v{18+(i&1)}, v{64+i}, v{64+i}')
    s('''v_add_f32 v16, v16, v17
    v_add_f32 v18, v18, v19''')
    for d in ('quad_perm:[1,0,3,2]', 'quad_perm:[2,3,0,1]', 'row_half_mirror'):
        s(f'v_add_f32_dpp v16, v16, v16 {d} row_mask:0xf bank_mask:0xf')
        s(f'v_add_f32_dpp v18, v18, v18 {d} row_mask:0xf bank_mask:0xf')
    s(f'''v_mul_f32 v16, {fb(1/448)}, v16
    v_mul_f32 v18, {fb(1/448)}, v18
    v_fma_f32 v18, -v16, v16, v18
    v_max_f32 v18, 0, v18''')
    bf16r(s, 'v18', 'v18'); s(f'v_add_f32 v18, {fb(1e-5)}, v18'); bf16r(s, 'v18', 'v18')
    s('''v_sqrt_f32 v18, v18
    v_mov_b32 v15, s34
    v_cvt_pk_bf16_f32 v14, v16, v18
    v_and_b32 v11, 7, v1
    v_cmp_eq_u32 vcc, 0, v11
    s_lshl_b32 s42, s2, 6''')
    s(f's_add_u32 s42, s42, {STATS}'); base(s, 46, 32, 's42')
    s('''s_and_saveexec_b64 s[48:49], vcc
    global_store_dwordx2 v1, v[14:15], s[46:47] sc1
    s_mov_b64 exec, s[48:49]''')
def tr_addr(s, d, t):
    s(f'''v_lshrrev_b32 {d}, 5, v1
    v_bfe_u32 {t}, v1, 2, 2
    v_lshl_add_u32 {d}, {d}, 3, {t}
    v_bfe_u32 {t}, v1, 4, 1
    v_lshlrev_b32 {d}, 6, {d}
    v_lshl_add_u32 {d}, {t}, 5, {d}
    v_and_b32 {t}, 3, v1
    v_lshl_add_u32 {d}, {t}, 3, {d}''')
def w1_issue(s):
    base(s, 52, 20, 's48'); s('global_load_dwordx4 v[92:95], v18, s[52:53]')
def w1_unit(s):
    s(f'v_add_u32 v19, {RB}, v13')
    tr_addr(s, 'v17', 'v11')
    s(f'''s_lshl_b32 s42, s35, 10
    s_add_u32 s42, s42, {RB}
    v_add_u32 v17, s42, v17
    s_mul_i32 s42, s50, 28
    s_mul_i32 s43, s51, 7
    s_add_u32 s42, s42, s43
    s_lshl_b32 s42, s42, 10
    s_add_u32 s42, s42, {W1S}'''); base(s, 52, 32, 's42')
def w1_unit2(s):
    s('''ds_write_b128 v19, v[92:95]
    ds_read_b64_tr_b16 v[96:97], v17
    ds_read_b64_tr_b16 v[98:99], v17 offset:256
    global_store_dwordx4 v13, v[96:99], s[52:53] sc1''')
def w1_flag(s, vm=0):
    s('''s_lshl_b32 s42, s16, 2
    s_add_u32 s42, s42, s51
    s_lshl_b32 s42, s42, 5
    s_add_u32 s42, s42, s35
    s_lshl_b32 s42, s42, 2''')
    s(f's_add_u32 s42, s42, {W1F}'); base(s, 52, 32, 's42')
    s('''v_mov_b32 v18, 0
    v_mov_b32 v19, s34''')
    s.wait(vm=vm)
    s('''s_mov_b64 exec, 1
    global_store_dword v18, v19, s[52:53] sc1
    s_mov_b64 exec, -1''')
def exp_addr(s):
    s(f'''v_and_b32 v11, 255, v0
    v_lshlrev_b32 v11, 3, v11
    v_sub_u32 v11, 2047, v11
    v_cvt_f32_u32 v11, v11
    s_lshr_b32 s42, s35, 2
    s_mul_i32 s42, s42, {2*GS}''')
    for e in range(9): s(f'v_add_f32 v{34+e}, {fb(-e)}, v11')
    s('v_max_f32 v42, 0, v42')
    for e in range(0, 9, 2): s(f'v_cvt_pk_bf16_f32 v{34+e}, v{34+e}, v{34+min(e+1,8)}')
    for e in range(0, 9, 2):
        if e < 8: s(f'v_and_b32 v{35+e}, 0xffff0000, v{34+e}')
        s(f'v_lshlrev_b32 v{34+e}, 16, v{34+e}')
    for e in range(9): s(f'v_cvt_u32_f32 v{34+e}, v{34+e}')
    for e in range(9):
        p = f'v{34+e}'; d = f'v{2+e}'
        s(f'''v_lshrrev_b32 {d}, 8, {p}
        v_and_b32 v11, 7, {p}
        v_lshl_add_u32 {d}, {d}, 3, v11
        v_bfe_u32 v11, {p}, 3, 5
        v_lshl_add_u32 {d}, {d}, 5, v11
        v_lshl_add_u32 {d}, {d}, 2, s42''')
def kg_setup(s, isB):
    lo = LOG2E - struct.unpack('<f', struct.pack('<f', LOG2E))[0]
    s(f'''s_and_b32 s42, s35, 2
    s_lshl_b32 s42, s42, 3
    s_lshr_b32 s43, s40, s42
    s_lshl_b32 s43, s43, 16
    s_mov_b32 s48, {fb(LOG2E)}
    v_mov_b32 v39, s43
    v_mul_f32 v38, s48, v39
    v_fma_f32 v40, s48, v39, -v38
    v_fmac_f32 v40, {fb(lo)}, v39
    v_exp_f32 v38, v38
    v_mul_f32 v40, {fb(math.log(2))}, v40
    v_fmac_f32 v38, v38, v40''')
    bf16r(s, 'v38', 'v38')
    s(f'''s_and_b32 s42, s35, 3
    s_mul_i32 s42, s42, {GS}
    s_add_u32 s54, s42, {HI if isB else 0}
    v_lshl_add_u32 v33, v1, 3, s54
    v_lshlrev_b32 v34, 16, v29
    v_and_b32 v35, 0xffff0000, v29
    v_mul_f32 v34, s48, v34
    v_mul_f32 v35, s48, v35
    v_exp_f32 v34, v34
    v_exp_f32 v35, v35
    v_lshlrev_b32 v36, 16, v30
    v_and_b32 v37, 0xffff0000, v30
    v_cvt_pk_bf16_f32 v35, v34, v35
    v_mul_f32 v36, v38, v36
    v_mul_f32 v37, v38, v37
    v_lshlrev_b32 v34, 16, v35
    v_and_b32 v35, 0xffff0000, v35
    v_mul_f32 v34, v38, v34
    v_mul_f32 v35, v38, v35
    v_mul_f32 v36, {fb((-1 if isB else 1)/(2*math.pi))}, v36
    v_mul_f32 v37, {fb((-1 if isB else 1)/(2*math.pi))}, v37
    v_mul_f32 v34, {fb(-LOG2E)}, v34
    v_mul_f32 v35, {fb(-LOG2E)}, v35''')
def cpow(s, d, p):
    s(f'''v_mul_f32 v60, {fb(p)}, v34
    v_mul_f32 v61, {fb(p)}, v35
    v_mul_f32 v62, {fb(p)}, v36
    v_mul_f32 v63, {fb(p)}, v37
    v_exp_f32 v60, v60
    v_exp_f32 v61, v61
    v_fract_f32 v62, v62
    v_fract_f32 v63, v63
    v_cos_f32 v{d}, v62
    v_cos_f32 v{d+1}, v63
    v_sin_f32 v{d+2}, v62
    v_sin_f32 v{d+3}, v63
    v_pk_mul_f32 {V(d,2)}, {V(d,2)}, v[60:61]
    v_pk_mul_f32 {V(d+2,2)}, {V(d+2,2)}, v[60:61]''')
def cmul(d, a, m, t):
    return [f'v_pk_mul_f32 {V(t,2)}, {V(a,2)}, {V(m,2)}', f'v_pk_mul_f32 {V(t+2,2)}, {V(a,2)}, {V(m+2,2)}',
            f'v_pk_fma_f32 {V(d,2)}, {V(a+2,2)}, {V(m+2,2)}, {V(t,2)} neg_lo:[1,0,0] neg_hi:[1,0,0]',
            f'v_pk_fma_f32 {V(d+2,2)}, {V(a+2,2)}, {V(m,2)}, {V(t+2,2)}']
cw = [0, 0]
def crow(a, row, k=0):
    c = 128 + 6 * k + 2 * (cw[k] % 3); cw[k] += 1
    return [f'v_cvt_pk_bf16_f32 v{c}, v{a}, v{a+1}', f'v_cvt_pk_bf16_f32 v{c+1}, v{a+2}, v{a+3}', f'ds_write_b64 v33, {V(c,2)} offset:{row*ROW}']
def zipl(a, b):
    o = []
    for i in range(max(len(a), len(b))): o += a[i:i+1] + b[i:i+1]
    return o
def kg_lo(s, mid, fill=[]):
    cpow(s, 40, 8); cpow(s, 48, 128)
    s('''v_mov_b32 v128, 0x3f803f80
    v_mov_b32 v129, 0
    ds_write_b64 v33, v[128:129]'''); cw[0] = 1
    a = crow(40, 1) + cmul(44, 40, 40, 52) + crow(44, 2); b = crow(48, 16, 1)
    for j in range(3, 16): a += cmul(44, 44, 40, 52) + crow(44, j)
    for j in range(17, 32): b += cmul(48, 48, 40, 56) + crow(48, j, 1)
    o = weave(zipl(a, b), fill); n = len(o) * 2 // 3; s(o[:n]); mid(s); s(o[n:])
HROW = {256:8, 258:9, 512:10, 768:11, 260:12, 262:13, 516:14, 772:15, 1024:16, 1280:17, 1536:18, 1792:19, 2048:24}
def kg_hi(s, mid, fill=[]):
    cpow(s, 40, 1); cpow(s, 44, 256)
    s('''v_add_f32 v38, v38, v38
    v_lshlrev_b32 v48, 16, v31
    v_and_b32 v49, 0xffff0000, v31
    v_lshlrev_b32 v50, 16, v32
    v_and_b32 v51, 0xffff0000, v32
    v_mul_f32 v48, v38, v48
    v_mul_f32 v49, v38, v49
    v_mul_f32 v50, -v38, v50
    v_mul_f32 v51, -v38, v51''')
    s(cmul(52, 48, 44, 60))
    a = crow(48, 0); b = crow(52, 8, 1)
    for p in range(1, 8):
        a += cmul(48, 48, 40, 56) + crow(48, p)
        if p in (2, 6): a += cmul(124, 48, 44, 56) + crow(124, HROW[256+p])
        if p == 4: a += cmul(140, 48, 44, 56) + crow(140, 12)
    for p in range(512, 2049, 256): b += cmul(52, 52, 44, 60) + crow(52, HROW[p], 1)
    b += cmul(140, 140, 44, 60) + crow(140, 14, 1) + cmul(140, 140, 44, 60) + crow(140, 15, 1)
    o = weave(zipl(a, b), fill); n = len(o) // 2; s(o[:n]); mid(s); s(o[n:])
def kg_mfma(s):
    s(f'''v_and_b32 v11, 31, v1
    v_lshrrev_b32 v12, 5, v1
    v_mul_u32_u24 v13, {ROW}, v11
    v_lshl_add_u32 v13, v12, 4, v13
    v_add_u32 v13, s54, v13
    v_lshlrev_b32 v12, 9, v12
    v_lshl_add_u32 v12, v11, 2, v12
    v_add_u32 v12, s54, v12''')
def kg_mfma2(s, fill=[]):
    rd = lambda k: [f'ds_read_b128 {V(80+8*(k%6),4)}, v13 offset:{HI+32*k}', f'ds_read_b128 {V(84+8*(k%6),4)}, v13 offset:{32*k}']
    for k in range(5): s(rd(k))
    for k in range(16):
        if k + 5 < 16: s(rd(k + 5))
        s(f'v_mfma_f32_32x32x16_bf16 v[64:79], {V(80+8*(k%6),4)}, {V(84+8*(k%6),4)}, {"0" if k==0 else "v[64:79]"}')
        s(fill[k*len(fill)//16:(k+1)*len(fill)//16])
    for r, p in enumerate([0,1,2,3,256,258,512,768,1024,1280,1536,1792,2048]):
        s(f'ds_write_b32 v12, v{64+r} offset:{((p>>8)*8+(p&7))*128}')
def expand(s):
    for e in range(9): s(f'ds_read2st64_b32 {V(12+2*e,2)}, v{2+e} offset0:0 offset1:{GS//256}')
    s(f'''v_and_b32 v11, 255, v0
    s_lshr_b32 s42, s35, 2
    s_mul_i32 s42, s42, {RCH}
    s_add_u32 s42, s42, {RB}
    v_cmp_ne_u32 vcc, 255, v11
    v_lshl_add_u32 v11, v11, 4, s42''')
    for e in range(9): s(f'v_add_f32 v{12+2*e}, v{12+2*e}, v{13+2*e}')
    s('v_cndmask_b32 v28, 0, v28, vcc')
    for i in range(4): s(f'v_cvt_pk_bf16_f32 v{4+i}, v{12+4*i}, v{14+4*i}')
    s('ds_write_b128 v11, v[4:7]')
    for i in range(4): s(f'v_cvt_pk_bf16_f32 v{32+i}, v{14+4*i}, v{16+4*i}')
    s(f'ds_write_b128 v11, v[32:35] offset:{RCP}')
def zero_pads(s):
    s(f'''s_mul_i32 s42, s35, {RCP}
    s_add_u32 s42, s42, {RB+4096-4*RCP}
    v_and_b32 v11, 7, v1
    v_lshl_add_u32 v11, v11, 2, s42
    v_mov_b32 v14, 0
    v_mov_b32 v15, 0
    ds_write_b32 v11, v14
    s_and_b32 s42, s35, 1
    s_mul_i32 s42, s42, {UCH}
    s_add_u32 s42, s42, {UB}
    v_min_u32 v11, 59, v1
    v_lshl_add_u32 v11, v11, 3, s42
    ds_write_b64 v11, v[14:15]''')
def spin_begin(s, l):
    s(f's_mov_b32 s55, {SPIN}'); s.label(l)
def spin_end(s, l):
    s(f'''s_cbranch_vccz {l}x
    s_sub_u32 s55, s55, 1
    s_cmp_lg_u32 s55, 0
    s_cbranch_scc1 {l}'''); s.label(l + 'x')
def ug_addr(s):
    s(f'''v_and_b32 v36, 255, v0
    v_lshrrev_b32 v37, 2, v36
    v_and_b32 v38, 3, v36
    v_mul_u32_u24 v37, 14336, v37
    v_lshl_add_u32 v37, v38, 4, v37
    v_lshlrev_b32 v38, 4, v36
    s_and_b32 s42, s37, 1
    s_mul_i32 s42, s42, 7168
    s_lshr_b32 s43, s37, 1
    s_lshl_b32 s43, s43, 6
    s_add_u32 s42, s42, s43
    s_add_u32 s42, s42, {XT}''')
    base(s, 56, 32, 's42')
    for i in range(1, 4): base(s, 56 + 2*i, 54 + 2*i, 64*14336)
    base(s, 64, 32, STATS + 4096); base(s, 66, 32, STATS + 12288)
def ug_issue(s):
    for i in range(4):
        s(f'global_load_dwordx4 {V(64+4*i,4)}, v38, s[{64+2*(i>>1)}:{65+2*(i>>1)}] offset:{-4096 if i%2==0 else 0} sc1')
        s(f'global_load_dwordx4 {V(80+4*i,4)}, v37, s[{56+2*i}:{57+2*i}] sc1')
def ug_check(s):
    s('v_min_u32 v39, v65, v67'); s('v_max_u32 v40, v65, v67')
    for i in [4,1,5,2,6,3,7]:
        s(f'v_min3_u32 v39, v39, v{65+4*i}, v{67+4*i}'); s(f'v_max3_u32 v40, v40, v{65+4*i}, v{67+4*i}')
    s('''v_xor_b32 v39, s34, v39
    v_xor_b32 v40, s34, v40
    v_or_b32 v39, v39, v40
    v_cmp_ne_u32 vcc, 0, v39''')
def ubuild(s):
    s(f'v_lshlrev_b32 v36, 2, v36'); s(f'v_add_u32 v39, {UB+480}, v36')
    for t in range(8):
        ms = 64 + 2*t; x = 80 + 2*t
        s(f'''v_and_b32 v{ms+1}, 0xffff0000, v{ms}
        v_lshlrev_b32 v{ms}, 16, v{ms}
        v_rcp_f32 v{ms+1}, v{ms+1}
        v_lshlrev_b32 v{96+2*t}, 16, v{x}
        v_and_b32 v{97+2*t}, 0xffff0000, v{x}
        v_pk_add_f32 {V(112+2*t,2)}, {V(96+2*t,2)}, {V(ms,2)} op_sel_hi:[1,0] neg_lo:[0,1] neg_hi:[0,1]
        v_pk_mul_f32 {V(112+2*t,2)}, {V(112+2*t,2)}, {V(ms,2)} op_sel:[0,1]''')
        if t & 1:
            i = t >> 1
            s(f'''v_cvt_pk_bf16_f32 v{48+2*i}, v{110+2*t}, v{112+2*t}
            v_cvt_pk_bf16_f32 v{49+2*i}, v{111+2*t}, v{113+2*t}
            ds_write_b32 v39, v{48+2*i} offset:{1024*i}
            ds_write_b32 v39, v{49+2*i} offset:{1024*i+UCH}''')
def vbuild(s):
    s(f'''s_lshl_b32 s42, s41, 16
    s_and_b32 s43, s41, 0xffff0000
    v_and_b32 v36, 255, v0
    v_lshrrev_b32 v37, 7, v36
    v_mul_u32_u24 v37, 1280, v37
    v_bfe_u32 v38, v36, 1, 2
    v_mul_u32_u24 v38, 320, v38
    v_add_u32 v37, v37, v38
    v_bfe_u32 v38, v36, 3, 4
    v_lshl_add_u32 v37, v38, 4, v37
    v_and_b32 v38, 1, v36
    v_lshl_add_u32 v37, v38, 3, v37''')
    for i in range(4):
        for ch in range(2):
            d = 64 + 4*i + 2*ch
            s(f'''v_fma_f32 v{d}, v{112+4*i+ch}, s{42+ch}, v{96+4*i+ch}
            v_fma_f32 v{d+1}, v{114+4*i+ch}, s{42+ch}, v{98+4*i+ch}
            ds_write_b64 v37, {V(d,2)} offset:{VB+10240*ch+2560*i}''')
def conv_addr(s):
    s(f'''v_and_b32 v11, 15, v1
    v_lshrrev_b32 v12, 4, v1
    s_lshr_b32 s42, s35, 1
    s_and_b32 s43, s35, 1
    s_mul_i32 s48, s42, {RCH}
    s_lshl_b32 s49, s43, 8
    s_sub_u32 s48, s48, s49
    s_add_u32 s48, s48, {RB + 2*(2031 - 32*(8+3)) }
    v_lshlrev_b32 v13, 3, v12
    v_sub_u32 v13, v13, v11
    v_and_b32 v14, 1, v11
    v_mul_u32_u24 v14, {RCP-2}, v14
    v_lshl_add_u32 v13, v13, 1, s48
    v_add_u32 v13, {RCP-2}, v13
    v_sub_u32 v2, v13, v14
    v_subrev_u32 v3, 1024, v2
    v_subrev_u32 v4, 2048, v2
    v_subrev_u32 v5, 3072, v2
    s_mul_i32 s48, s42, {UCH}
    s_sub_u32 s48, s48, s49
    s_add_u32 s48, s48, {UB + 448 - 192}
    v_lshlrev_b32 v6, 5, v11
    v_lshl_add_u32 v6, v12, 4, v6
    v_add_u32 v6, s48, v6
    s_mul_i32 s48, s35, 10240
    v_mul_u32_u24 v7, 320, v12
    v_lshl_add_u32 v7, v11, 4, v7
    v_add_u32 v7, s48, v7''')
def conv(s, fill, f0, f1):
    NA, NB = 5, 10
    mf = [(r, sg, mu) for r in range(4) for sg in range(8) for mu in range(8 - sg)]
    last = {}
    for n, (r, sg, mu) in enumerate(mf): last[('A', r, sg)] = n; last[('B', r, mu)] = n
    order = []
    for (r, sg, mu) in mf:
        for k in (('A', r, sg), ('B', r, mu)):
            if k not in order: order.append(k)
    qa = [k for k in order if k[0] == 'A']; qb = [k for k in order if k[0] == 'B']
    fa = [16 + 4*i for i in range(NA)]; fbb = [96 + 4*i for i in range(NB)]; slot = {}
    def ld(k):
        if k[0] == 'A':
            d = slot[k] = fa.pop(0); o = 128*(1 - (k[2] & 1)) + 16*(3 - k[1]); a = 2 + (k[2] >> 1)
            return [f'ds_read2_b32 {V(d,2)}, v{a} offset0:{o} offset1:{o+1}', f'ds_read2_b32 {V(d+2,2)}, v{a} offset0:{o+2} offset1:{o+3}']
        d = slot[k] = fbb.pop(0)
        return [f'ds_read_b128 {V(d,4)}, v6 offset:{512*k[2] + 64*(3-k[1])}']
    s(ld(qa.pop(0)))
    for i in range(8): s(ld(qb.pop(0)))
    items = []; seen = set()
    for n, (r, sg, mu) in enumerate(mf):
        R = sg + mu; acc = V(64 + 4*R, 4)
        it = [f'v_mfma_f32_16x16x32_bf16 {acc}, {V(slot[("A",r,sg)],4)}, {V(slot[("B",r,mu)],4)}, {acc if R in seen else 0}']
        seen.add(R)
        if last[('A', r, sg)] == n: fa.append(slot[('A', r, sg)])
        if last[('B', r, mu)] == n: fbb.append(slot[('B', r, mu)])
        if qa and fa: it += ld(qa.pop(0))
        if qb and fbb: it += ld(qb.pop(0))
        items.append(it)
    yw = lambda R: f'ds_write_b128 v7, {V(64+4*R,4)} offset:{YB+1280*R}'
    for R in range(5): items[mf.index((3, R, 0)) + 6].append(yw(R))
    s(weave(items, fill, f0, f1))
    for R in range(5, 8): s(yw(R))
def epilogue(s):
    s(f"""v_and_b32 v38, 3, v1
    v_mul_u32_u24 v38, 320, v38
    v_lshrrev_b32 v37, 2, v1
    v_lshl_add_u32 v37, v37, 4, v38
    s_mul_i32 s43, s35, 1280
    v_add_u32 v37, s43, v37
    v_lshlrev_b32 v36, 4, v0
    s_lshl_b32 s42, s37, 13
    s_add_u32 s42, s42, {HT}""")
    base(s, 18, 32, 's42')
def epilogue2(s):
    for h in range(2):
        s(f"""ds_read_b128 {V(16+4*h,4)}, v37 offset:{VB+10240*h}
        ds_read_b128 {V(24+4*h,4)}, v37 offset:{YB+20480*h}
        ds_read_b128 {V(48+4*h,4)}, v37 offset:{YB+10240+20480*h}""")
    for i in (0, 1, 2, 3):
        s(f"""v_pk_add_f32 {V(24+2*i,2)}, {V(24+2*i,2)}, {V(48+2*i,2)}
        v_pk_add_f32 {V(16+2*i,2)}, {V(16+2*i,2)}, {V(24+2*i,2)}""")
    for i in range(4): s(f'v_cvt_pk_bf16_f32 v{40+i}, v{16+i}, v{20+i}')
    s('global_store_dwordx4 v36, v[40:43], s[18:19] sc1')
```

```python
from gen1 import *
import gen1
def flag_hf(s, d):
    base(s, d, 32, W1F + 28)
    s(f'''v_and_b32 v44, 255, v0
    v_min_u32 v44, 223, v44
    v_lshlrev_b32 v44, 7, v44
    global_load_dword v45, v44, s[{d}:{d+1}] sc1''')
def flag_addr(s, d, off, unit, w1=False):
    s(f'''s_lshl_b32 s42, {unit}, 9
    s_add_u32 s42, s42, {off}'''); base(s, d, 32, 's42')
    s(f'''v_and_b32 v44, 3, v1
    v_lshlrev_b32 v44, 7, v44''')
    if w1: s('''v_bfe_u32 v45, v1, 2, 3
    v_min_u32 v45, 6, v45
    v_lshl_add_u32 v44, v45, 2, v44''')
    s(f'''global_load_dword v45, v44, s[{d}:{d+1}] sc1''')
def flag_wait(s, d, l):
    s('v_cmp_ne_u32 vcc, s34, v45')
    def body(s):
        spin_begin(s, l)
        s(f'global_load_dword v45, v44, s[{d}:{d+1}] sc1'); s('v_cmp_ne_u32 vcc, s34, v45')
        spin_end(s, l)
    s.cond('s_cbranch_vccz', body)
def w1_addr(s):
    s('''s_lshl_b32 s50, s39, 3
    s_add_u32 s50, s50, s35''')
    flag_addr(s, 52, W1F, 's50', True)
def w1_loads(va='v10'):
    o = L(f'''s_mul_i32 s42, s50, 28672
    s_add_u32 s42, s42, {W1S+4096}
    s_add_u32 s52, s32, s42
    s_addc_u32 s53, s33, 0
    v_lshlrev_b32 {va}, 4, v1''')
    o = [o]
    for k in range(28):
        it = [f'global_load_dwordx4 {V(144+4*k,4)}, {va}, s[52:53] offset:{1024*(k%8)-4096} sc1']
        if k % 8 == 7: it += ['s_add_u32 s52, s52, 8192', 's_addc_u32 s53, s53, 0']
        o.append(it)
    return o
TS = 146688
def raw_addr(s):
    s('''s_lshl_b32 s50, s39, 3
    s_add_u32 s50, s50, s35
    s_lshl_b32 s42, s50, 6
    v_lshrrev_b32 v142, 2, v1
    v_and_b32 v143, 3, v1
    v_mul_u32_u24 v142, 3584, v142
    v_lshl_add_u32 v100, v143, 4, v142'''); base(s, 14, 20, 's42')
def raw_loads(va): return [[f'global_load_dwordx4 {V(144+4*k,4)}, {va}, s[14:15]', 's_add_u32 s14, s14, 57344', 's_addc_u32 s15, s15, 0'] for k in range(28)]
def raw_tr(s, a, b, k0=0, k1=28, fill=[]):
    if k0 == k1: return s(fill)
    tr_addr(s, a, b)
    s(f'''s_lshl_b32 s42, s35, 10
    s_add_u32 s42, s42, {TS}
    v_add_u32 {a}, s42, {a}
    v_lshlrev_b32 {b}, 4, v0
    v_add_u32 {b}, {TS}, {b}''')
    for k in range(k0, k1):
        s(fill[k-k0:k-k0+1] if k < k1 - 1 else fill[k-k0:])
        s(f'ds_write_b128 {b}, {V(144+4*k,4)}'); s([f'ds_read_b64_tr_b16 {V(144+4*k+2*x,2)}, {a} offset:{256*x}' for x in range(2)])
def raw_dma(s, va, a, b, k0, mid, last):
    tr_addr(s, a, b)
    s(f'''s_mul_i32 s17, s35, 14336
    s_add_u32 s17, s17, {HB - 4*14336}
    v_add_u32 {a}, s17, {a}''')
    op = {}
    def ld(k):
        s(f's_add_u32 m0, s17, {1024*((k-k0)%14)}'); s(f'global_load_lds_dwordx4 {va}, s[14:15]'); op[k] = s.vm[-1]
        s(['s_add_u32 s14, s14, 57344', 's_addc_u32 s15, s15, 0'])
        if k == 27: last(s)
    for k in range(k0, min(28, k0 + 14)):
        ld(k)
        if k == k0 + 7: mid(s)
    for k in range(k0, 28):
        if op[k] in s.vm: s.wait(vm=len(s.vm) - 1 - s.vm.index(op[k]))
        s([f'ds_read_b64_tr_b16 {V(144+4*k+2*x,2)}, {a} offset:{1024*((k-k0)%14)+256*x}' for x in range(2)])
        if k > k0 and k + 13 < 28: s.touch(V(144+4*(k-1), 4)); ld(k + 13)
def part_base(s, d, dst, slot, extra=0):
    s(f'''s_mul_i32 s42, s38, 7
    s_add_u32 s42, s42, {dst}
    s_mul_i32 s42, s42, 49152
    s_add_u32 s42, s42, {PART + slot*8192 + extra}'''); base(s, d, 32, 's42')

AB = set()
XG = F2 + 4096
HINT = 0x3C0000
def xg_base(s):
    s(f'''s_lshl_b32 s42, s38, 7
    s_add_u32 s42, s42, {XG}
    s_getreg_b32 s10, hwreg(HW_REG_XCC_ID, 0, 4)'''); base(s, 8, 32, 's42')
def xg_pub(s):
    s('''s_lshl_b32 s42, s39, 3
    v_mov_b32 v14, s34
    v_mov_b32 v15, s10
    v_mov_b32 v16, s42
    s_mov_b64 exec, 1
    global_store_dwordx2 v16, v[14:15], s[8:9] sc1
    s_mov_b64 exec, -1''')
def xg_issue(s): s('global_load_dwordx2 v[56:57], v58, s[8:9] sc1')
def xg_addr(s):
    s('''v_min_u32 v58, 6, v1
    v_lshlrev_b32 v58, 3, v58'''); xg_issue(s)
def xg_fin(s):
    s('''v_xor_b32 v56, s34, v56
    v_xor_b32 v57, s10, v57
    v_or_b32 v56, v56, v57
    v_cmp_ne_u32 vcc, 0, v56
    s_cmp_eq_u64 vcc, 0
    s_cselect_b64 s[4:5], -1, 0
    s_not_b64 s[6:7], s[4:5]''')
def colsum_pre(s, isB):
    s('''s_lshl_b32 s42, s50, 6
    v_and_b32 v12, 31, v1
    v_lshl_add_u32 v12, v12, 1, s42
    global_load_ushort v13, v12, s[22:23]''')
    s('''s_lshl_b32 s42, s39, 7
    v_and_b32 v12, 7, v1
    v_lshl_add_u32 v12, v12, 4, s42
    global_load_dwordx4 v[40:43], v12, s[26:27]''')
def colsum(s, isB, mid=None, at=0):
    s('''v_mov_b32 v14, 0x3f803f80
    v_mov_b32 v16, 0
    v_mov_b32 v17, 0''')
    for i in range(112):
        s(f'v_dot2c_f32_bf16 v{16+(i&1)}, v{144+i}, v14')
        if i + 1 == at: mid(s)
    s('''v_add_f32 v16, v16, v17
    v_mov_b32 v17, v16
    v_permlane32_swap_b32 v16, v17
    v_add_f32 v16, v16, v17
    v_cvt_pk_bf16_f32 v9, v16, v16
    v_and_b32 v17, 0xffff0000, v9
    v_sub_f32 v16, v16, v17
    v_cvt_pk_bf16_f32 v10, v16, 0
    v_lshl_or_b32 v8, v13, 16, v13
    v_mov_b32 v11, 0
    v_mov_b32 v35, 0
    v_cmp_le_u32 vcc, 32, v1
    v_cndmask_b32 v32, 0, v8, vcc
    v_cndmask_b32 v33, 0, v9, vcc
    v_cndmask_b32 v34, 0, v10, vcc
    v_sub_u32 v8, v8, v32
    v_sub_u32 v9, v9, v33
    v_sub_u32 v10, v10, v34''')
def hg_addr(s):
    s(f"""v_lshrrev_b32 v12, 4, v0
    v_and_b32 v15, 15, v0
    v_lshlrev_b32 v2, 13, v12
    v_lshl_add_u32 v2, v15, 4, v2
    v_mul_u32_u24 v14, {HR}, v15
    v_lshl_add_u32 v3, v12, 2, v14
    v_add_u32 v3, {HB}, v3
    v_add_u32 v21, 128, v3
    v_mov_b32 v20, 0x3f803f80
    v_and_b32 v12, 31, v1
    v_lshrrev_b32 v15, 5, v1
    v_mul_u32_u24 v4, {HR}, v12
    v_lshl_add_u32 v4, v15, 4, v4
    v_add_u32 v4, {HB}, v4
    v_mul_u32_u24 v22, 80, v12
    v_lshl_add_u32 v22, v15, 5, v22
    s_lshl_b32 s42, s35, 2
    s_add_u32 s42, s42, {SB}
    v_add_u32 v22, s42, v22
    v_mul_u32_u24 v5, 80, v1
    v_add_u32 v5, {SB}, v5
    s_lshl_b32 s42, s38, 8
    s_add_u32 s42, s42, {HT}""")
    base(s, 56, 32, 's42')
    for i in range(1, 7): base(s, 56 + 2*i, 54 + 2*i, 64*4096)
def max_chain(s, d, a, n, hook=None):
    for i in range(0, n, 2):
        if hook and i % 4 == 0: s(hook(i // 4))
        s(f'v_max3_u32 {d}, {d}, v{a+i}, v{a+i+1}' if i else f'v_max_u32 {d}, v{a}, v{a+1}')
    s(f'v_cmp_eq_u32 vcc, -1, {d}')
def hg_issue(s):
    for i in range(7): s(f'global_load_dwordx4 {V(64+4*i,4)}, v2, s[{56+2*i}:{57+2*i}] sc1')
def hg_check(s):
    def hook(i):
        o = [f'ds_write2st64_b32 v{21 if i & 1 else 3}, v{64+4*i+t}, v{65+4*i+t} offset0:{57*t+(i>>1)} offset1:{57*t+57+(i>>1)}' for t in (0, 2)]
        for t in range(4):
            x = f'v{64+4*i+t}'
            o += [f'v_dot2c_f32_bf16 v{24+t}, {x}, v20', f'v_dot2c_f32_bf16 v{28+t}, {x}, {x}']
        return o
    s([f'v_mov_b32 v{24+i}, 0' for i in range(8)])
    max_chain(s, 'v12', 64, 28, hook)
def hg_stats(s):
    s([f'v_permlane32_swap_b32 v{24+t}, v{28+t}' for t in range(4)] + [f'v_add_f32 v{24+t}, v{24+t}, v{28+t}' for t in range(4)])
    s("""v_permlane16_swap_b32 v24, v25
    v_permlane16_swap_b32 v26, v27
    v_add_f32 v24, v24, v25
    v_add_f32 v26, v26, v27
    ds_write2st64_b32 v22, v24, v26 offset0:0 offset1:10""")
def retry(s, l, issue, check):
    def body(s): spin_begin(s, l); issue(s); check(s); spin_end(s, l)
    s.cond('s_cbranch_vccz', body)
def f12_addr(s):
    s(f"""s_lshr_b32 s42, s35, 1
    s_lshl_b32 s42, s42, 7
    s_add_u32 s42, s42, {F1}"""); base(s, 8, 32, 's42')
    s(f"""v_min_u32 v44, 6, v1
    v_lshlrev_b32 v44, 9, v44
    global_load_dword v45, v44, s[8:9] sc1
    s_lshl_b32 s42, s38, 7
    s_add_u32 s42, s42, {F2}"""); base(s, 6, 32, 's42')
PW, PBB = 4608, 126976
def w2_addr(s):
    s(f"""s_mul_i32 s42, s39, 229376
    s_mul_i32 s44, s35, 28672
    s_add_u32 s44, s44, s42
    s_add_u32 s44, s44, {W2S + 4096}""")
    base(s, 44, 32, 's44'); base(s, 46, 44, 8192); base(s, 48, 46, 8192); base(s, 52, 48, 4096)
def mlp_addr(s, isB):
    s(f"""s_mul_i32 s42, s38, 229376
    s_lshl_b32 s43, s35, 12
    s_add_u32 s10, s42, s43
    s_add_u32 s10, s10, {PART}
    s_and_b32 s13, s38, 3
    s_mul_i32 s13, s13, 229376
    s_add_u32 s13, s13, s43
    s_add_u32 s13, s13, {W1S}
    s_lshl_b32 s42, s39, 15
    s_add_u32 s42, s42, s10"""); base(s, 4, 32, 's42')
    s(f"""v_lshrrev_b32 v12, 5, v1
    v_and_b32 v14, 31, v1
    v_mul_u32_u24 v6, 576, v12
    v_lshl_add_u32 v6, v14, 4, v6
    s_mul_i32 s11, s35, {PW}
    s_add_u32 s12, s11, {PBB - 4*PW if isB else 8*PW}
    v_add_u32 v6, s11, v6
    v_bfe_u32 v12, v0, 3, 5
    v_and_b32 v14, 7, v0
    v_mul_u32_u24 v39, 576, v14
    v_and_b32 v15, 31, v12
    v_lshl_add_u32 v39, v15, 4, v39
    s_lshl_b32 s42, s39, 7
    s_add_u32 s42, s42, {HB}
    v_mul_u32_u24 v7, {HR}, v12
    v_lshl_add_u32 v7, v14, 4, v7
    v_add_u32 v7, s42, v7""")
def gx_addr():
    o = []
    for r in range(1, 7):
        o += [L(f"""s_add_u32 s42, s39, {r}
        s_cmp_ge_u32 s42, 7
        s_cselect_b32 s43, 7, 0
        s_sub_u32 s42, s42, s43"""), L(f"""s_lshl_b32 s42, s42, 15
        s_add_u32 s42, s42, {'s13' if 'gx' in AB else 's10'}
        s_add_u32 s{54+2*r}, s32, s42
        s_addc_u32 s{55+2*r}, s33, 0""")]
    o += [L("""s_mul_i32 s42, s38, 57344
    s_lshl_b32 s43, s39, 7
    s_add_u32 s42, s42, s43
    s_add_u32 s68, s28, s42
    s_addc_u32 s69, s29, 0""")]
    return o
def out_addr():
    return L("""v_bfe_u32 v8, v0, 3, 5
    v_and_b32 v9, 15, v8
    v_lshrrev_b32 v8, 4, v8
    v_lshl_add_u32 v8, v9, 2, v8
    v_and_b32 v9, 7, v0
    v_mul_u32_u24 v3, 896, v8
    v_lshl_add_u32 v3, v9, 4, v3""")
def w2reg(n): return 96 + 4*n
def w2ld(n, isB, dma=False, va='v2'):
    b = [44, 46, 48, 52][n >> 3]; o = (n & 7) + 4*(n >= 24)
    if dma: return ([f's_mov_b32 m0, s{11+(n>=24)}'] if n % 4 == 0 else []) + [f'global_load_lds_dwordx4 {va}, s[{b}:{b+1}] offset:{1024*o-4096} sc1']
    return f'global_load_dwordx4 {V(w2reg(n),4)}, {va}, s[{b}:{b+1}] offset:{1024*o-4096} sc1'
def g1():
    rd = lambda n: [f'ds_read_b128 {V(48+4*(n%4),4)}, v4 offset:{(n//28)*32*HR+32*(n%28)}']
    pre = rd(0) + rd(1) + rd(2); it = []
    for n in range(56):
        k = n % 28; acc = V(64 + 16*(n // 28), 16)
        it.append((rd(n + 3) if n + 3 < 56 else []) + [f'v_mfma_f32_32x32x16_bf16 {acc}, {V(144+4*k,4)}, {V(48+4*(n%4),4)}, {acc if k else 0}'])
    return pre, it
def addto(it, fill, a, b):
    for i, f in enumerate(fill): it[a + i * (b - a) // len(fill)].append(f)
K0 = -2 * math.sqrt(2 / math.pi) * LOG2E
def stats_fin():
    o = []
    for st in (4, 2): o += [f'v_add_f32 v{k+i}, v{k+i}, v{k+i+st}' for i in range(st) for k in (16, 24)]
    o += ['v_add_f32 v16, v16, v17', 'v_add_f32 v17, v24, v25']
    m, q, a, b, c, d = range(16, 22); cs = 36
    r = lambda x, y: [f'v_cvt_pk_bf16_f32 v{x}, v{y}, v{y}', f'v_and_b32 v{x}, 0xffff0000, v{x}']
    o += [f'v_mul_f32 v{b}, {fb(-1/448)}, v{m}', f'v_mul_f32 v{q}, {fb(1/448)}, v{q}', f'v_fma_f32 v{q}, -v{b}, v{b}, v{q}', f'v_max_f32 v{q}, 0, v{q}']
    o += [f'v_add_f32 v{a}, {fb(1e-5)}, v{q}', f'v_sqrt_f32 v{a}, v{a}'] + r(d, b) + r(a, a)
    o += [f'v_rcp_f32 v{c}, v{a}', f'v_sub_f32 v{m}, v{b}, v{d}', f'v_mul_f32 v{q}, v{q}, v{c}', f'v_cvt_pk_bf16_f32 v13, v{d}, v{m}', f'v_mul_f32 v{q}, v{q}, v{c}']
    o += r(q, q) + [f'v_add_f32 v{q}, {fb(1e-5)}, v{q}', f'v_sqrt_f32 v{q}, v{q}', f'v_lshrrev_b32 v14, 16, v{d}'] + r(q, q)
    o += [f'v_mul_f32 v{cs}, v{a}, v{q}', f'v_rcp_f32 v{c}, v{cs}'] + r(a, cs)
    o += [f'v_sub_f32 v{q}, v{cs}, v{a}', f'v_mul_f32 v{cs+1}, {fb(K0)}, v{c}', f'v_cvt_pk_bf16_f32 v12, v{a}, v{q}', 'v_mov_b32 v15, 0',
          f'v_mul_f32 v{c}, v{c}, v{c}', f'v_mul_f32 v{c}, {fb(0.044715)}, v{c}', f'v_mul_f32 v{cs+2}, v{c}, v{cs+1}']
    o += [f'v_mov_b32 v{44+i}, v{36+i}' for i in range(3)] + [f'v_permlane32_swap_b32 v{36+i}, v{44+i}' for i in range(3)]
    return o
def gelu(acc, cs, half):
    o = []
    for u in range(4):
        T = lambda i: 16 + 4*(u & 1) + i
        for f in (lambda i: f'v_mul_f32 v{T(i)}, v{acc+4*u+i}, v{acc+4*u+i}', lambda i: f'v_fma_f32 v{T(i)}, v{T(i)}, v{cs+2}, v{cs+1}',
                  lambda i: f'v_mul_f32 v{T(i)}, v{T(i)}, v{acc+4*u+i}', lambda i: f'v_exp_f32 v{T(i)}, v{T(i)}',
                  lambda i: f'v_fma_f32 v{T(i)}, v{T(i)}, v{cs}, v{cs}', lambda i: f'v_rcp_f32 v{T(i)}, v{T(i)}',
                  lambda i: f'v_mul_f32 v{T(i)}, v{T(i)}, v{acc+4*u+i}'):
            o += [f(i) for i in range(0 if 'ge' in AB else 4)]
        g = 48 if half else 24
        o += [f'v_cvt_pk_bf16_f32 v{g+2*u}, v{T(0)}, v{T(1)}', f'v_cvt_pk_bf16_f32 v{g+1+2*u}, v{T(2)}, v{T(3)}']
        if u & 1: o.append(f'global_store_dwordx4 v2, {V(g-2+2*u,4)}, s[4:5] offset:{(u>>1)*1024+half*2048} sc1')
    if O['pf']: o += ['v_lshlrev_b32 v16, 5, v1', f'global_load_dword v10, v16, s[4:5] offset:{half*2048} sc1']
    return o
def gld(h, g): return [f'global_load_dwordx4 {V(200+8*r+4*x,4)}, v2, s[{54+2*r}:{55+2*r}] offset:{2048*h+1024*x} sc1' for r in range(1+3*g, 4+3*g) for x in range(2)]
class Rec(list):
    def __call__(s, t): s.extend(L(t) if isinstance(t, str) else t)
def gchk(g):
    r = Rec(); max_chain(r, 'v11', 208 + 24*g, 24); return list(r)
def g2(s, h, X, bar, c1, ex=[], e0=0):
    it = []
    for n in range(28):
        r, x, e = n >> 2, (n >> 1) & 1, n & 1; acc = V(64 + 16*e, 16)
        it.append([f'v_mfma_f32_32x32x16_bf16 {acc}, {V(w2reg(n),4)}, {V((200+8*r if r else 48 if h else 24)+4*x,4)}, {acc if n > 1 else 0}'])
    if bar is not None: it[bar].append(lambda s: s.barrier(keep=True))
    rt = lambda g: retry(s, f'Lg{h}{g}{X}', lambda s: s(gld(h, g) + ([f's_add_u32 s72, s72, {10000 << (4*h)}'] if gen1.STAMP and 1 in gen1.SEL else [])), lambda s: s(gchk(g)))
    s(weave(it[:4], gchk(0), 1)); rt(0); stamp(s, 30 + 2*h); s(weave(it[4:16], gchk(1), c1)); rt(1); stamp(s, 31 + 2*h); s(weave(it[16:], ex, e0))
def dump(off):
    o = []
    for q in range(4):
        o += [f'v_cvt_pk_bf16_f32 v{16+4*q+i}, v{64+8*q+2*i}, v{65+8*q+2*i}' for i in range(4)] + [f'ds_write_b128 v6, {V(16+4*q,4)} offset:{off+1152*q}']
    return o
def unp(d, a): return [f'v_lshlrev_b32 v{d}, 16, v{a}', f'v_and_b32 v{d+1}, 0xffff0000, v{a}']
def accum(s, regs, pk=False):
    for a in regs:
        for k in range(4):
            t = 84 + 2*(k & 1); s(unp(t, a + k) + ([f'v_pk_add_f32 {V(64+2*k,2)}, {V(64+2*k,2)}, {V(t,2)}'] if pk or O['pk'] else [f'v_add_f32 v{64+2*k+i}, v{64+2*k+i}, v{t+i}' for i in range(2)]))
def fin_init(s, h):
    s(f'ds_read_b128 v[80:83], v7 offset:{32*HR*h}')
    for k in range(4): s(unp(64 + 2*k, 40 + k))
def fin_out(s, h):
    for k in range(4): s(f'v_cvt_pk_bf16_f32 v{88+k}, v{64+2*k}, v{65+2*k}')
    s(f'global_store_dwordx4 v3, v[88:91], s[68:69] offset:{1792*h} sc1')
PR = [16, 20, 24, 28, 32, 12, 72, 76]
def mlp(s, isB, O):
    X = 'B' if isB else 'A'; nw = 28
    s('v_lshlrev_b32 v2, 4, v1'); s('global_load_dword v47, v11, s[6:7] sc1'); s([w2ld(n, isB) for n in range(O['lp'], O['l0'])])
    s.barrier(); stamp(s, 8)
    pre, it = g1(); P = lambda k: O[k + X]
    prio = lambda k: s(f's_setprio {P("p") >> (4*k) & 3}')
    ld = [w2ld(n, isB) for n in range(nw)]; l0 = O['l0']; l2 = P('l2'); g0 = P('g0'); gp = P('gp')
    ext = lambda acc, a: f'v_mfma_f32_32x32x16_bf16 {V(acc,16)}, {V(a,4)}, v[12:15], {V(acc,16)}'
    prio(0); s(pre + [f'ds_read_b128 {V(16+4*i,4)}, v5 offset:{16*i}' for i in range(4)])
    if O['dma']:
        addto(it, ld[l0:12] + [w2ld(n, isB, True) for n in range(20, 28)], 0, 28); ld = ld[:20]; l2 = min(l2, 20)
        it[30] += ['v_add_u32 v8, s11, v2', 'v_add_u32 v9, s12, v2']; it[43].append(lambda s: s.touch('dma'))
        addto(it, [f'ds_read_b128 {V(w2reg(n),4)}, v{8+(n>=24)} offset:{1024*(n&3)}' for n in range(20, 28)], 44, 52)
    else: addto(it, ld[l0:12], 0, 28)
    addto(it, ld[12:l2], 28, P('le')); addto(it, gx_addr(), 40, 56)
    s(weave(it[:28], stats_fin(), P('s0'), P('s1'))); s(ext(64, 8)); stamp(s, 9); prio(1)
    s('v_cmp_ne_u32 vcc, s34, v47')
    retry(s, 'Lf2' + X, lambda s: s('global_load_dword v47, v11, s[6:7] sc1'), lambda s: s('v_cmp_ne_u32 vcc, s34, v47'))
    ge = gelu(64, 36, 0); s(it[28:28+g0]); s(ge[:gp]); prio(2); s(weave(it[28+g0:], ge[gp:], 0, P('gw')))
    s(ext(80, 32)); prio(3); stamp(s, 10); s(out_addr())
    ge = weave(gelu(80, 44, 1), ld[l2:], 0, 40); ga = P('ga')
    s(weave(ge, [lambda s: stamp(s, 34)] + gld(0, 0) + gld(0, 1), ga, P('gb'))); stamp(s, 11); prio(4)
    gb = gld(1, 0) + gld(1, 1); eb = P('eb')
    g2(s, 0, X, None, O['c1'], gb[:eb], O['e0']); prio(5); stamp(s, 12)
    e2 = P('e2'); s(weave(dump(0), gb[eb:e2], 0, P('dw')))
    if O['fin'] and isB:
        s(gb[e2:]); prio(6); g2(s, 1, X, O['b9'], O['c1']); stamp(s, 13); s(f'v_add_u32 v6, {PBB - 4*PW}, v6'); s(dump(0)); stamp(s, 14); s.barrier()
    elif O['fin']:
        s(gb[e2:]); prio(6); g2(s, 1, X, None, O['c1']); prio(7); s(dump(8*PW)); stamp(s, 13); s.barrier()
        s([f'ds_read_b128 {V(PR[i],4)}, v39 offset:{PW*i}' for i in range(8)]); fin_init(s, 0); accum(s, PR[:4])
        s([f'ds_read_b128 {V(PR[i],4)}, v39 offset:{PW*(8+i)}' for i in range(4)]); accum(s, PR[4:] + [80]); fin_out(s, 0)
        fin_init(s, 1); s(f'v_add_u32 v39, {PBB}, v39'); accum(s, PR[:4] + [80])
        s.barrier(); stamp(s, 14)
        s([f'ds_read_b128 {V(PR[i],4)}, v39 offset:{PW*i}' for i in range(4)]); accum(s, PR[:4], True); fin_out(s, 1)
    elif isB:
        fin_init(s, 0); accum(s, [80]); s.barrier(keep=True)
        s([f'ds_read_b128 {V(PR[i],4)}, v39 offset:{PW*i}' for i in range(8)])
        r = Rec(); accum(r, PR); s(weave(list(r), gb[e2:], O['f2'], O['f3'])); fin_out(s, 0); prio(6)
        g2(s, 1, X, O['b9b'], O['c1']); stamp(s, 13); s(f'v_add_u32 v6, {PBB - 4*PW}, v6'); s(dump(0)); stamp(s, 14); s.barrier()
    else:
        s(gb[e2:]); prio(6); g2(s, 1, X, O['b9a'], O['c1']); prio(7); s(dump(8*PW)); fin_init(s, 1); accum(s, [80]); stamp(s, 13); s.barrier()
        s([f'ds_read_b128 {V(PR[i],4)}, v39 offset:{PW*(8+i)}' for i in range(4)]); s(f'v_add_u32 v39, {PBB}, v39'); accum(s, PR[:4])
        s.barrier(); stamp(s, 14)
        s([f'ds_read_b128 {V(PR[i],4)}, v39 offset:{PW*i}' for i in range(4)]); accum(s, PR[:4], True); fin_out(s, 1)
def pub_flag(s, off, vm=0):
    def f(s):
        s(f'''s_lshl_b32 s42, s2, 7
        s_add_u32 s42, s42, {off}'''); base(s, 52, 32, 's42')
        s('''v_mov_b32 v2, 0
        v_mov_b32 v3, s34
        s_mov_b64 exec, 1
        global_store_dword v2, v3, s[52:53] sc1
        s_mov_b64 exec, -1''')
    s.wait(vm=vm); s.barrier(); s('s_cmp_lg_u32 s35, 0'); s.cond('s_cbranch_scc1', f)
def helper(s, on, O):
    s('''s_min_u32 s50, s2, 27
    s_mul_i32 s42, s50, 57344''')
    base(s, 52, 24, 's42')
    s('''v_lshrrev_b32 v2, 3, v0
    v_and_b32 v3, 7, v0
    v_mul_u32_u24 v4, 896, v2
    v_lshl_add_u32 v4, v3, 4, v4
    v_mul_u32_u24 v5, 928, v2
    v_lshl_add_u32 v5, v3, 4, v5''')
    xt_addr(s); mktag(s); on(s, 7, xt_finish, True); on(s, 7, st_finish); stamp(s, 4)
    if O['hb'] == 1: s.barrier()
    for i in range(7): s(f'global_load_dwordx4 {V(96+4*i,4)}, v4, s[52:53] offset:{128*i}')
    s(f'''s_mul_i32 s42, s2, 229376
    s_add_u32 s42, s42, {PART}'''); base(s, 58, 32, 's42')
    s([f'v_mov_b32 v{60+i}, -1' for i in range(4)])
    def hp(n):
        for i in range(n): s('global_store_dwordx4 v13, v[60:63], s[58:59] sc1'); base(s, 58, 58, 8192)
    if O['hb'] == 2: s.barrier()
    hp(O['hp'])
    def w2(s):
        s('''s_and_b32 s42, s35, 1
        s_lshr_b32 s43, s35, 1
        s_lshl_b32 s44, s2, 1
        s_add_u32 s44, s44, s42
        s_lshr_b32 s45, s44, 3
        s_and_b32 s44, s44, 7
        s_mul_i32 s46, s42, 29696
        v_lshrrev_b32 v2, 5, v1
        v_bfe_u32 v3, v1, 2, 2
        v_lshl_add_u32 v2, v2, 2, v3
        v_mul_u32_u24 v2, 928, v2
        v_bfe_u32 v3, v1, 4, 1
        v_lshl_add_u32 v2, v3, 5, v2
        v_and_b32 v3, 1, v1
        v_lshl_add_u32 v2, v3, 4, v2
        v_bfe_u32 v3, v1, 1, 1
        v_lshl_add_u32 v2, v3, 3, v2''')
        s(f"""s_lshr_b32 s47, s43, 1
        s_mul_i32 s47, s47, {16*928}
        s_and_b32 s48, s43, 1
        s_lshl_b32 s48, s48, 6
        s_add_u32 s47, s47, s48
        s_add_u32 s47, s47, s46
        v_add_u32 v7, s47, v2
        s_mul_i32 s47, s44, 28672
        s_lshl_b32 s48, s43, 10
        s_add_u32 s47, s47, s48
        s_add_u32 s47, s47, {W2S}
        v_lshlrev_b32 v3, 4, v1""")
        for i in range(7): s(f'ds_write_b128 v5, {V(96+4*i,4)} offset:{128*i}')
        s.barrier()
        for i in range(7):
            s(f'ds_read_b64_tr_b16 {V(128+4*i,2)}, v7 offset:{128*i}'); s(f'ds_read_b64_tr_b16 {V(130+4*i,2)}, v7 offset:{128*i+8*928}')
        for i in range(7):
            s(f"""s_cmp_lt_u32 s45, {i}
            s_cselect_b32 s42, 7, 0
            s_add_u32 s42, s42, s45
            s_lshl_b32 s42, s42, 12
            s_add_u32 s42, s42, s47
            s_add_u32 s42, s42, {i*(229376-4096)}"""); base(s, 52 + 2*(i & 1), 32, 's42')
            s(f'global_store_dwordx4 v3, {V(128+4*i,4)}, s[{52+2*(i&1)}:{53+2*(i&1)}] sc1')
    s('s_cmp_ge_u32 s2, 28'); s.cond('s_cbranch_scc1', w2)
    stamp(s, 1); hp(4); pub_flag(s, F1, 4); stamp(s, 2)
    s(f's_mov_b32 s55, {O["npf"] - 4 - O["hp"]}'); s.label('Lpf'); hp(1)
    s('''s_sub_u32 s55, s55, 1
    s_cmp_lg_u32 s55, 0
    s_cbranch_scc1 Lpf''')
    pub_flag(s, F2); stamp(s, 3)
```

```python
import sys
from gen2 import *
NAME = 'sequential_preLN__ssm_conv_s4d__mixer_channel_mlp__prompt'
DBGW = None; ENC = None; NE = 0
def dump_stamps(s):
    if not gen1.STAMP: return
    stamp(s, 15)
    s('s_mov_b32 s48, 0')
    if DBGW is not None:
        def dd(s):
            for i in range(1, 16): s(f's_sub_u32 s42, s{70+2*i}, s70'); s(f'v_mov_b32 v{15+i}, s42')
            s('v_mov_b32 v31, s48'); s('v_mov_b32 v2, 0'); s('s_mov_b64 exec, 1')
            for i in range(4): s(f'global_store_dwordx4 v2, {V(16+4*i,4)}, s[30:31] offset:{16*i}')
            s('s_mov_b64 exec, -1')
            if ENC is not None:
                global NE; NE += 1
                s(f's_sub_u32 s42, s{70+2*ENC}, s70'); s('s_add_u32 s42, s42, 5000'); s.label(f'Lenc{NE}')
                s(f'''s_memrealtime s[44:45]
                s_sub_u32 s44, s44, s70
                s_cmp_lt_u32 s44, s42
                s_cbranch_scc1 Lenc{NE}''')
        s(f'''s_lshl_b32 s42, s2, 3
        s_add_u32 s42, s42, s35
        s_cmp_eq_u32 s42, {DBGW}'''); s.cond('s_cbranch_scc0', dd)
    s('''s_lshl_b32 s42, s2, 3
    s_add_u32 s42, s42, s35
    s_lshl_b32 s42, s42, 6''')
    s(f's_add_u32 s42, s42, {DBG}'); base(s, 46, 32, 's42'); s('v_mov_b32 v2, 0')
    for i in range(16): s(f'v_mov_b32 v{16+i}, s{70+2*i}')
    s('s_mov_b64 exec, 1')
    for i in range(4): s(f'global_store_dwordx4 v2, {V(16+4*i,4)}, s[46:47] offset:{16*i}')
O.update(ug=1, xo=1, na=28, f0=40, f1=130, l0=0, lp=10, dma=1, leA=40, leB=40, l2A=28, l2B=28, g0A=1, g0B=1, gpA=200, gpB=200, gwA=4, gwB=4, gaA=121, gbA=122, gaB=121, gbB=122, c1=6, ebA=0, ebB=0, e0=0, dwA=20, dwB=20, b9a=3, b9b=15, e2A=12, e2B=0, f2=0, f3=60, pk=0, fin=0, hdA=56, hdB=112, r1A=10, r2A=20, r1B=0, r2B=0, r3B=10, ta=10, tb=28, db=1, wp=1, b9=3, pf=0,
  s0A=2, s1A=26, s0B=0, s1B=2, pA=0x01010101, pB=0x01010100, t4=1, n7=50, n8=28, nb=0, hp=0, hb=1, wm=0, lpf=2, cp=2, npf=28)
def tail(s, isB, rest):
    X = 'B' if isB else 'A'
    s.barrier(); stamp(s, 5)
    epilogue2(s); n0 = len(s.vm); colsum_pre(s, isB); w2_addr(s)
    if O['lp']:
        s('v_lshlrev_b32 v23, 4, v1'); n1 = len(s.vm); flag_wait(s, 8, 'Lf1' + X); n0 -= n1 - len([x for x in s.vm if id(x) not in s.opt])
        stamp(s, 37); s([w2ld(n, isB, va='v23') for n in range(O['lp'])]); hg_addr(s)
    else: hg_addr(s)
    if O.get('ps'): xg_addr(s)
    s(rest); s.wait(vm=len(s.vm) - 1 - max(i for i, x in enumerate(s.vm) if x.k == 'vms')); stamp(s, 6)
    if O['hd' + X] == 0: hg_issue(s)
    colsum(s, isB, (lambda s: hg_issue(s)) if O['hd' + X] else None, O['hd' + X]); mlp_addr(s, isB); hg_check(s); retry(s, 'Lhg' + X, hg_issue, hg_check); hg_stats(s)
    if not O['lp']: flag_wait(s, 8, 'Lf1' + X)
    stamp(s, 7)
    if O.get('ps'): xg_fin(s)
    if not isB:
        def ep(s):
            s('''s_xor_b32 s42, s34, 0x5bd1e995
            s_add_u32 s42, s42, 1
            v_mov_b32 v12, 0
            v_mov_b32 v13, s42
            s_mov_b64 exec, 1
            global_store_dword v12, v13, s[32:33] sc1
            s_mov_b64 exec, -1''')
        s('''s_or_b32 s42, s36, s35
        s_cmp_eq_u32 s42, 0'''); s.cond('s_cbranch_scc0', ep)
    mlp(s, isB, O); dump_stamps(s); s('s_endpgm')
def build():
    O['l0'] = max(O['l0'], O['lp'])
    p = S(); prologue(p)
    def on(s, w, f, ne=False): s(f's_cmp_eq_u32 s35, {w}'); s.cond('s_cbranch_scc1' if ne else 's_cbranch_scc0', f, (w, ne))
    on(p, 7, st_issue)
    if O.get('pt'): on(p, 6, pretouch)
    p('''s_cmp_lt_u32 s2, 32
    s_cbranch_scc1 Lhelper''')
    h = p.fork()
    def wpf(s): s('s_mul_i32 s42, s37, 7168'); base(s, 52, 20, 's42'); s('global_load_dwordx4 v[92:95], v13, s[52:53]')
    if O['wp']: on(p, 7, wpf, True)
    stamp(p, 21); xt_addr(p); exp_addr(p); stamp(p, 22); mktag(p)
    def stf(s): s('s_setprio 3'); st_finish(s); s('s_setprio 0'); st_prefill(s) if not O.get('lpf') else 0
    on(p, 7, xt_finish, True); on(p, 7, stf); stamp(p, 1)
    p('s_mov_b32 s16, s50')
    raw_addr(p)
    p("""s_cmp_ge_u32 s35, 4
    s_cbranch_scc1 LB""")
    a = p.fork(); b = p.fork()
    s = a; s('v_mov_b32 v141, v100'); rl = raw_loads('v141'); r1, r2 = O['r1A'], O['r2A']
    kg_setup(s, False); stamp(s, 24); kg_lo(s, lambda s: 0, rl[:r1]); stamp(s, 25); kg_mfma(s); stamp(s, 26); s.barrier(); stamp(s, 2)
    kg_mfma2(s, rl[r1:r2]); s.barrier(); stamp(s, 3)
    expand(s); stamp(s, 27); s(rl[r2:]); conv_addr(s); epilogue(s)
    raw_tr(s, 'v140', 'v141', 0, O['ta'])
    stamp(s, 28); s.barrier(); stamp(s, 4)
    conv(s, [f12_addr], 100, 101); stamp(s, 29); tail(s, False, lambda s: raw_tr(s, 'v60', 'v61', O['ta']))
    s = b; s.label('LB'); rl = raw_loads('v100'); r1, r2 = O['r1B'], O['r2B']
    kg_setup(s, True); stamp(s, 24); kg_hi(s, lambda s: on(s, 7, st_prefill) if O.get('lpf') == 2 else 0, rl[:r1]); stamp(s, 25); ug_addr(s); stamp(s, 26)
    s('v_mov_b32 v43, v100'); rl = raw_loads('v43'); s.barrier(); stamp(s, 2)
    def hfl(s): w1_flag(s, len(s.vm) - 1 - max(i for i, x in enumerate(s.vm) if x.k == 'vms'))
    if O['ug'] == 0: ug_issue(s)
    s(rl[r1:r2]); zero_pads(s); on(s, 7, hfl); s.barrier(); stamp(s, 3)
    if O['ug'] == 1: ug_issue(s)
    expand(s); stamp(s, 27)
    if O['ug'] == 2: ug_issue(s)
    ug_check(s); retry(s, 'Lug', ug_issue, ug_check)
    stamp(s, 28); ubuild(s); s.barrier(); stamp(s, 4)
    r3 = max(r2, O['r3B'])
    if O['db']: raw_dma(s, 'v43', 'v58', 'v59', r2, lambda s: (vbuild(s), epilogue(s), raw_tr(s, 'v60', 'v61', 0, r2)), lambda s: flag_hf(s, 46))
    else: s(rl[r2:r3]); vbuild(s); epilogue(s); raw_tr(s, 'v60', 'v61', 0, O['tb'], rl[r3:] + [lambda s: flag_hf(s, 46)])
    stamp(s, 36); flag_wait(s, 46, 'Lhf'); f12_addr(s); stamp(s, 29)
    tail(s, True, lambda s: raw_tr(s, 'v60', 'v61', O['tb']))
    h.label('Lhelper'); helper(h, on, O); dump_stamps(h); h('s_endpgm')
    ref = open(f'cdna_kernels/{NAME}.s.ref').read().split('\n')
    hdr = [l for l in ref if l.startswith(';') and '@launch' not in l]
    o = hdr + [f'; @launch grid=(256,1,1) block=(512,1,1) lds={LDS}', '.amdgcn_target "amdgcn-amd-amdhsa--gfx950"', '.text',
        f'.globl {NAME}_kernel', '.p2align 8', f'.type {NAME}_kernel,@function', f'{NAME}_kernel:']
    o += p.out + a.out + b.out + h.out + ['Lend:', '  s_endpgm', '']
    o += ref[ref.index('.section .rodata,"a"'):]
    print('nops', a.nn, b.nn, h.nn, 'lines', len(a.out), len(b.out), len(h.out), file=sys.stderr)
    t = '\n'.join(o)
    import subprocess
    open('_t.s', 'w').write(t.replace('CODESZ', '0x1234'))
    subprocess.check_call('clang -x assembler -target amdgcn-amd-amdhsa -mcpu=gfx950 -c _t.s -o _t.o', shell=True)
    sz = [int(l.split()[2], 16) for l in subprocess.check_output('llvm-objdump -h _t.o', shell=True, text=True).split('\n') if ' .text ' in l][0]
    print('code', sz, file=sys.stderr)
    return t.replace('CODESZ', str(sz - 128))
if __name__ == '__main__':
    gen1.STAMP = 'stamp' in sys.argv
    if 'cyc' in sys.argv: gen1.CLK = 's_memtime'
    for a in sys.argv:
        if a.startswith('dbg='): DBGW = int(a[4:])
        if a.startswith('o:'): k, v = a[2:].split('='); O[k] = int(v, 0)
        if a.startswith('ab='): AB.update(a[3:].split(','))
        if a.startswith('enc='): ENC = int(a[4:])
        if a.startswith('sel='): gen1.SEL[:] = [int(x) for x in a[4:].split(',')]
    open(sys.argv[1], 'w').write(build())
```
